```python
import torch

def _softmax(x, axis=-1):
    return torch.softmax(x, dim=axis)
def _gelu(x):
    return torch.nn.functional.gelu(x, approximate="tanh")
def _silu(x):
    return torch.nn.functional.silu(x)
def _sigmoid(x):
    return torch.sigmoid(x)
def _layernorm(x, axis=-1, eps=1e-5):
    m = x.mean(dim=axis, keepdim=True)
    v = x.var(dim=axis, keepdim=True, unbiased=False)
    return (x - m) / torch.sqrt(v + eps)
def _scatter_add(tgt, idx, src, axis=0):
    return tgt.clone().index_add_(axis, idx, src)
def _segment_sum(src, seg, n):
    out = torch.zeros((n,) + src.shape[1:], dtype=src.dtype)
    return out.index_add_(0, seg, src)
def _pad(x, pw):
    flat = tuple(v for pair in reversed(pw) for v in pair)
    return torch.nn.functional.pad(x, flat)

kernel_name = 'standalone__gqa_block_cached__decode'

def setup_inputs():

    _w = (lambda a: (lambda t: t.to(torch.bfloat16) if t.is_floating_point() else t)(torch.as_tensor(a)))
    B, Sq, D = 1, 1, 448
    Hq, Hkv, Sk, Dh = 16, 8, 8192, 256
    assert Hq % Hkv == 0, (Hq, Hkv)
    return {
        "x": _w((lambda *s: torch.randn(*s, dtype=torch.bfloat16) * 0.8)(B, Sq, D)),
        "k_cache": _w((lambda *s: torch.randn(*s, dtype=torch.bfloat16) * 0.8)(B, Hkv, Sk, Dh)),
        "v_cache": _w((lambda *s: torch.randn(*s, dtype=torch.bfloat16) * 0.05)(B, Hkv, Sk, Dh)),
        "wq": _w((lambda *s: torch.randn(*s, dtype=torch.bfloat16) * 0.8)(D, Hq * Dh) * (D ** -0.5)),
        "wo": _w((lambda *s: torch.randn(*s, dtype=torch.bfloat16) * 0.05)(Hq * Dh, D) * ((Hq * Dh) ** -0.5)),
    }

def reference(x, k_cache, v_cache, wq, wo):
    B, Sq, D = x.shape
    Hq, Dh = 16, 256
    Hkv = k_cache.shape[1]
    rep = Hq // Hkv
    q = (lambda x, *d: x.permute(*d))((x @ wq).reshape(B, Sq, Hq, Dh), 0, 2, 1, 3)
    k = (lambda x, n, axis: torch.repeat_interleave(x, n, dim=axis))(k_cache, rep, axis=1)
    v = (lambda x, n, axis: torch.repeat_interleave(x, n, dim=axis))(v_cache, rep, axis=1)
    scores = torch.einsum("bhqd,bhkd->bhqk", q, k) * (Dh ** -0.5)
    p = _softmax(scores, axis=-1)
    o = torch.einsum("bhqk,bhkd->bhqd", p, v)
    return (lambda x, *d: x.permute(*d))(o, 0, 2, 1, 3).reshape(B, Sq, Hq * Dh) @ wo
```

```python
import sys
opts = dict(a.split('=') for a in sys.argv[2:])
NT = opts.get('nt', '1') == '1'
STAMP = opts.get('stamp', '0') == '1'
PLAYOUT = opts.get('playout', 'B')
SLEEP = int(opts.get('sleep', '1'))
MAXSPIN = int(opts.get('maxspin', '100000'))

L = []
def e(s=''): L.append('    ' + s if s and not s.endswith(':') else s)
nt = ' nt' if NT else ''

EPOCH = 0
QG = 4096
MLG = 32768
OG = 65536
PG = 2097152
STAMPS = 128 << 20
WQL = 131072
QL = WQL + 14336
MB = QL + 1024
LB = MB + 64
LDS_TOTAL = LB + 64

S_K, S_V, S_WQ, S_WO, S_WS, S_X, S_OUT = 20, 24, 28, 32, 36, 40, 44
sH, sS, sW, sTAG = 48, 49, 50, 51
sT0, sT1, sT2, sT3 = 52, 53, 54, 55
sC = 56
sSPIN = 57
sBP = 58
def stamp(i):
    if STAMP:
        e(f's_memrealtime s[{60+2*i}:{61+2*i}]')
def srd(d, base, nbytes):
    e(f's_mov_b32 s{d}, s{base}')
    e(f's_and_b32 s{d+1}, s{base+1}, 0xffff')
    e(f's_mov_b32 s{d+2}, {nbytes}')
    e(f's_mov_b32 s{d+3}, 0x20000')
def store_stamps(idxs, slot0):
    if not STAMP: return
    e('s_waitcnt lgkmcnt(0)')
    e('s_mov_b64 exec, 1')
    e(f's_lshl_b32 s{sT0}, s2, 7')
    e(f's_add_u32 s{sT0}, s{sT0}, {STAMPS}')
    e(f'v_mov_b32 v152, 0')
    for k, i in enumerate(idxs):
        e(f'v_mov_b32 v154, s{60+2*i}')
        e(f'v_mov_b32 v155, s{61+2*i}')
        e(f'buffer_store_dwordx2 v[154:155], v152, s[{S_WS}:{S_WS+3}], s{sT0} offen offset:{(slot0+k)*8}')
        e('s_nop 1')
    e('s_mov_b64 exec, -1')

NAME = 'standalone__gqa_block_cached__decode_kernel'
hdr = open('standalone__gqa_block_cached__decode.s.ref').read().split('\n')
for l in hdr:
    if l.startswith('; Override') : break
    L.append(l)
L.append(f'; @launch grid=(256,1,1) block=(576,1,1) lds={LDS_TOTAL}')
L.append('.amdgcn_target "amdgcn-amd-amdhsa--gfx950"')
L.append('.text')
L.append(f'.globl {NAME}')
L.append('.p2align 8')
L.append(f'.type {NAME},@function')
L.append(f'{NAME}:')
e('s_cmp_ge_u32 s2, 256')
e('s_cbranch_scc1 L_end')
e('s_load_dwordx16 s[4:19], s[0:1], 0')
stamp(0)
e('v_lshrrev_b32 v1, 6, v0')
e('v_and_b32 v0, 63, v0')
e(f'v_readfirstlane_b32 s{sW}, v1')
e(f's_and_b32 s{sH}, s2, 7')
e(f's_lshr_b32 s{sS}, s2, 3')
e(f's_lshl_b32 s{sBP}, s{sH}, 5')
e(f's_add_u32 s{sBP}, s{sBP}, s{sS}')
e('v_and_b32 v2, 15, v0')
e('v_lshrrev_b32 v3, 4, v0')
e('v_and_b32 v4, 1, v0')
e('v_lshlrev_b32 v4, 4, v4')
e('v_mov_b32 v5, 0xffff')
e('v_lshlrev_b32 v5, v4, v5')
e('v_bfe_u32 v4, v0, 1, 2')
for j in range(4):
    e(f'v_cmp_eq_u32 vcc, {j}, v4')
    e('s_nop 1')
    e(f'v_cndmask_b32 v{14+j}, 0, v5, vcc')
e('s_waitcnt lgkmcnt(0)')
srd(S_WS, 18, 268435456)
e(f's_load_dword s{sTAG}, s[18:19], {EPOCH}')
e(f's_mov_b32 s{sC}, 0x3db8aa3b')
e(f's_cmp_eq_u32 s{sW}, 8')
e('s_cbranch_scc1 L_comm')

srd(S_K, 6, 33554432)
srd(S_V, 8, 33554432)
e(f's_lshl_b32 s{sT0}, s{sH}, 22')
e(f's_lshl_b32 s{sT1}, s{sS}, 17')
e(f's_add_u32 s{sT0}, s{sT0}, s{sT1}')
e(f's_lshl_b32 s{sT1}, s{sW}, 14')
e(f's_add_u32 s{sT0}, s{sT0}, s{sT1}')
e('v_lshrrev_b32 v5, 5, v0')
e('v_and_b32 v4, 31, v0')
e('v_xor_b32 v4, v4, v5')
e('v_lshlrev_b32 v4, 4, v4')
e('v_lshl_add_u32 v4, v5, 9, v4')
for j in range(16):
    if j % 4 == 0:
        e(f's_add_u32 s{sT2}, s{sT0}, {(j>>2)*4096}')
        e(f's_add_u32 m0, s{sT1}, {(j>>2)*4096}')
    x = ((2*j) & 15) << 4
    vr = 5 + (j & 1)
    e(f'v_xor_b32 v{vr}, {x}, v4')
    e(f'buffer_load_dwordx4 v{vr}, s[{S_K}:{S_K+3}], s{sT2} offen offset:{(j&3)*1024}{nt} lds')
e('v_lshlrev_b32 v7, 11, v3')
e('v_lshl_add_u32 v7, v2, 4, v7')
e(f's_add_u32 s{sT2}, s{sT0}, 8192')
for T in range(2):
    for r in range(4):
        for hf in range(2):
            d = 64 + ((T*4+r)*2+hf)*4
            so = sT0 if T == 0 else sT2
            e(f'buffer_load_dwordx4 v[{d}:{d+3}], v7, s[{S_V}:{S_V+3}], s{so} offen offset:{r*512+hf*256}{nt}')
stamp(1)
for k in range(4):
    e(f'v_add_u32 v{8+k}, {4*k}, v3')
    e(f'v_xor_b32 v{8+k}, v{8+k}, v2')
    e(f'v_lshlrev_b32 v{8+k}, 4, v{8+k}')
    e(f'v_lshl_add_u32 v{8+k}, v2, 9, v{8+k}')
    e(f'v_add_u32 v{8+k}, s{sT1}, v{8+k}')
e('v_lshrrev_b32 v12, 3, v2')
e('v_lshlrev_b32 v12, 9, v12')
e('v_lshl_add_u32 v12, v3, 4, v12')
e(f'v_add_u32 v12, {QL}, v12')
for r in list(range(20, 28)) + list(range(144, 152)):
    e(f'v_mov_b32 v{r}, 0')
e('s_waitcnt vmcnt(16) lgkmcnt(0)')
stamp(2)
e('s_barrier')
stamp(3)
for ih in range(2):
    for k in range(4):
        i = ih*4 + k
        e(f'ds_read_b128 v[{128+4*k}:{131+4*k}], v12 offset:{i*64}')
        for T in range(2):
            d = 32 + (k*2+T)*4
            e(f'ds_read_b128 v[{d}:{d+3}], v{8+k} offset:{T*8192+ih*256}')
    for k in range(4):
        e(f's_waitcnt lgkmcnt({(3-k)*3})' if not STAMP else 's_waitcnt lgkmcnt(0)')
        for T in range(2):
            d = 32 + (k*2+T)*4
            e(f'v_mfma_f32_16x16x32_bf16 v[{20+4*T}:{23+4*T}], v[{d}:{d+3}], v[{128+4*k}:{131+4*k}], v[{20+4*T}:{23+4*T}]')
e('s_nop 7')
e('v_max3_f32 v28, v20, v21, v22')
e('v_max3_f32 v28, v28, v23, v24')
e('v_max3_f32 v28, v28, v25, v26')
e('v_max_f32 v28, v28, v27')
def xg_reduce(op, v, t):
    e(f'v_mov_b32 v{t}, v{v}')
    e('s_nop 1')
    e(f'v_permlane16_swap_b32 v{t}, v{v}')
    e('s_nop 1')
    e(f'{op} v{v}, v{v}, v{t}')
    e(f'v_mov_b32 v{t}, v{v}')
    e('s_nop 1')
    e(f'v_permlane32_swap_b32 v{t}, v{v}')
    e('s_nop 1')
    e(f'{op} v{v}, v{v}, v{t}')
xg_reduce('v_max_f32', 28, 29)
e('v_lshrrev_b32 v30, 3, v2')
e('v_lshlrev_b32 v30, 5, v30')
e(f's_lshl_b32 s{sT2}, s{sW}, 2')
e(f's_add_u32 s{sT2}, s{sT2}, {MB}')
e(f'v_add_u32 v31, s{sT2}, v30')
e('s_mov_b64 exec, 0x101')
e('ds_write_b32 v31, v28')
e('s_mov_b64 exec, -1')
e('s_waitcnt lgkmcnt(0)')
e('s_barrier')
e(f'v_add_u32 v30, {MB}, v30')
e('ds_read_b128 v[128:131], v30')
e('ds_read_b128 v[132:135], v30 offset:16')
e('s_waitcnt lgkmcnt(0)')
e('v_max3_f32 v28, v128, v129, v130')
e('v_max3_f32 v28, v28, v131, v132')
e('v_max3_f32 v28, v28, v133, v134')
e('v_max_f32 v28, v28, v135')
e(f'v_mul_f32 v28, s{sC}, v28')
for r in range(20, 28):
    e(f'v_fma_f32 v{r}, v{r}, s{sC}, -v28')
for r in range(20, 28):
    e(f'v_exp_f32 v{r}, v{r}')
e('s_nop 0')
e('v_add_f32 v29, v20, v21')
e('v_add_f32 v13, v22, v23')
e('v_add_f32 v29, v29, v24')
e('v_add_f32 v13, v13, v25')
e('v_add_f32 v29, v29, v26')
e('v_add_f32 v13, v13, v27')
e('v_add_f32 v29, v29, v13')
xg_reduce('v_add_f32', 29, 13)
e(f'v_add_u32 v31, {LB-MB}, v31')
e('s_mov_b64 exec, 0x101')
e('ds_write_b32 v31, v29')
e('s_mov_b64 exec, -1')
for T in range(2):
    for r in range(4):
        p = 20 + 4*T + r
        a = 32 + (T*4+r)*4
        e(f'v_cvt_pk_bf16_f32 v{p}, v{p}, v{p}')
        for j in range(4):
            e(f'v_and_b32 v{a+j}, v{p}, v{14+j}')
stamp(4)
e('s_nop 1')
cnt = 16
for T in range(2):
    for r in range(4):
        a = 32 + (T*4+r)*4
        cnt -= 2
        e(f's_waitcnt vmcnt({cnt})')
        for hf in range(2):
            d = 64 + ((T*4+r)*2+hf)*4
            e(f'v_mfma_f32_16x16x32_bf16 v[{144+4*hf}:{147+4*hf}], v[{a}:{a+3}], v[{d}:{d+3}], v[{144+4*hf}:{147+4*hf}]')
stamp(5)
e('v_lshrrev_b32 v30, 1, v3')
e('v_lshlrev_b32 v30, 10, v30')
e('v_lshl_add_u32 v30, v2, 5, v30')
e('v_and_b32 v31, 1, v3')
e('v_lshl_add_u32 v30, v31, 4, v30')
e(f'v_add_u32 v30, s{sT1}, v30')
e('s_nop 7')
e('ds_write_b128 v30, v[144:147]')
e('ds_write_b128 v30, v[148:151] offset:512')
e('s_waitcnt lgkmcnt(0)')
e('s_barrier')
e(f's_lshl_b32 s{sT2}, s{sW}, 8')
e('v_lshlrev_b32 v30, 2, v0')
e(f'v_add_u32 v30, s{sT2}, v30')
for w in range(8):
    if w < 4:
        e(f'ds_read_b32 v{128+w}, v30 offset:{w*16384}')
    else:
        if w == 4: e('v_add_u32 v31, 65536, v30')
        e(f'ds_read_b32 v{128+w}, v31 offset:{(w-4)*16384}')
e(f's_add_u32 s{sTAG}, s{sTAG}, 1')
e('s_waitcnt lgkmcnt(0)')
e('v_add_f32 v128, v128, v129')
e('v_add_f32 v130, v130, v131')
e('v_add_f32 v132, v132, v133')
e('v_add_f32 v134, v134, v135')
e('v_add_f32 v128, v128, v130')
e('v_add_f32 v132, v132, v134')
e('v_add_f32 v136, v128, v132')
e(f'v_mov_b32 v137, s{sTAG}')
e('v_lshlrev_b32 v30, 1, v30')
e(f's_lshl_b32 s{sT2}, s{sBP}, 12')
e(f's_add_u32 s{sT2}, s{sT2}, {OG}')
e(f'buffer_store_dwordx2 v[136:137], v30, s[{S_WS}:{S_WS+3}], s{sT2} offen sc1')
e(f's_cmp_eq_u32 s{sW}, 0')
e('s_cbranch_scc0 L_cw_done')
e('v_lshrrev_b32 v30, 3, v2')
e('v_lshlrev_b32 v31, 5, v30')
e(f'v_add_u32 v31, {LB}, v31')
e('ds_read_b128 v[128:131], v31')
e('ds_read_b128 v[132:135], v31 offset:16')
e('s_waitcnt lgkmcnt(0)')
e('v_add_f32 v128, v128, v129')
e('v_add_f32 v130, v130, v131')
e('v_add_f32 v132, v132, v133')
e('v_add_f32 v134, v134, v135')
e('v_add_f32 v128, v128, v130')
e('v_add_f32 v132, v132, v134')
e('v_add_f32 v142, v128, v132')
e('v_mov_b32 v140, v28')
e(f'v_mov_b32 v141, s{sTAG}')
e(f'v_mov_b32 v143, s{sTAG}')
e('v_lshlrev_b32 v30, 9, v30')
e(f's_lshl_b32 s{sT2}, s{sH}, 10')
e(f's_lshl_b32 s{sT3}, s{sS}, 4')
e(f's_add_u32 s{sT2}, s{sT2}, s{sT3}')
e(f's_add_u32 s{sT2}, s{sT2}, {MLG}')
e('s_mov_b64 exec, 0x101')
e(f'buffer_store_dwordx4 v[140:143], v30, s[{S_WS}:{S_WS+3}], s{sT2} offen sc1')
e('s_mov_b64 exec, -1')
stamp(6)
store_stamps([0,1,2,3,4,5,6], 0)
e('L_cw_done:')
e('s_endpgm')

e('L_comm:')
e('s_setprio 3')
srd(S_WQ, 10, 3670016)
srd(S_X, 4, 896)
srd(S_WO, 12, 3670016)
srd(S_OUT, 14, 896)
e('v_lshlrev_b32 v4, 4, v3')
for i in range(14):
    e(f'buffer_load_dwordx4 v[{64+4*i}:{67+4*i}], v4, s[{S_X}:{S_X+3}], 0 offen offset:{64*i}')
e('v_lshrrev_b32 v5, 1, v0')
e('v_lshlrev_b32 v5, 13, v5')
e('v_and_b32 v6, 1, v0')
e('v_lshl_add_u32 v5, v6, 4, v5')
e(f's_lshl_b32 s{sT0}, s{sH}, 10')
e(f's_lshl_b32 s{sT1}, s{sS}, 5')
e(f's_add_u32 s{sT0}, s{sT0}, s{sT1}')
for j in range(14):
    if j % 4 == 0:
        e(f's_mov_b32 m0, {WQL + (j>>2)*4096}')
    e(f's_add_u32 s{sT1}, s{sT0}, {j*262144 - (j&3)*1024}')
    e(f'buffer_load_dwordx4 v5, s[{S_WQ}:{S_WQ+3}], s{sT1} offen offset:{(j&3)*1024} lds')
e('v_lshrrev_b32 v7, 2, v2')
e('v_lshl_add_u32 v7, v3, 3, v7')
e('v_lshlrev_b32 v7, 5, v7')
e('v_and_b32 v8, 3, v2')
e('v_lshl_add_u32 v7, v8, 3, v7')
e(f'v_add_u32 v7, {WQL}, v7')
for r in range(20, 24): e(f'v_mov_b32 v{r}, 0')
e('s_waitcnt vmcnt(0) lgkmcnt(0)')
e(f's_add_u32 s{sTAG}, s{sTAG}, 1')
stamp(8)
for i in range(14):
    a = 32 + (i & 3)*4
    e(f'ds_read_b64_tr_b16 v[{a}:{a+1}], v7 offset:{i*1024}')
    e(f'ds_read_b64_tr_b16 v[{a+2}:{a+3}], v7 offset:{i*1024+128}')
    if i >= 2:
        ii = i-2; aa = 32 + (ii & 3)*4
        e('s_waitcnt lgkmcnt(4)' if not STAMP else 's_waitcnt lgkmcnt(0)')
        e(f'v_mfma_f32_16x16x32_bf16 v[20:23], v[{aa}:{aa+3}], v[{64+4*ii}:{67+4*ii}], v[20:23]')
e('s_waitcnt lgkmcnt(0)')
for ii in (12, 13):
    aa = 32 + (ii & 3)*4
    e(f'v_mfma_f32_16x16x32_bf16 v[20:23], v[{aa}:{aa+3}], v[{64+4*ii}:{67+4*ii}], v[20:23]')
e('s_nop 7')
e('v_cvt_pk_bf16_f32 v24, v20, v21')
e(f'v_mov_b32 v25, s{sTAG}')
e('v_cvt_pk_bf16_f32 v26, v22, v23')
e(f'v_mov_b32 v27, s{sTAG}')
e('v_lshlrev_b32 v4, 4, v3')
e(f's_lshl_b32 s{sT0}, s{sH}, 11')
e(f's_add_u32 s{sT0}, s{sT0}, {QG}')
e(f's_lshl_b32 s{sT1}, s{sS}, 6')
e(f's_add_u32 s{sT1}, s{sT1}, s{sT0}')
e('s_mov_b32 exec_lo, 0x00010001')
e('s_mov_b32 exec_hi, 0x00010001')
e(f'buffer_store_dwordx4 v[24:27], v4, s[{S_WS}:{S_WS+3}], s{sT1} offen sc1')
e('s_mov_b64 exec, -1')
stamp(9)
def poll(label, loads, tagregs):
    e(f's_mov_b32 s{sSPIN}, 0')
    e(f'{label}:')
    for l in loads: e(l)
    e('s_waitcnt vmcnt(0)')
    e(f'v_cmp_eq_u32 vcc, s{sTAG}, v{tagregs[0]}')
    for t in tagregs[1:]:
        e(f'v_cmp_eq_u32 s[{sT2}:{sT3}], s{sTAG}, v{t}')
        e(f's_and_b64 vcc, vcc, s[{sT2}:{sT3}]')
    e('s_cmp_eq_u64 vcc, -1')
    e(f's_cbranch_scc1 {label}_ok')
    if SLEEP: e(f's_sleep {SLEEP}')
    e(f's_add_u32 s{sSPIN}, s{sSPIN}, 1')
    e(f's_cmp_lt_u32 s{sSPIN}, {MAXSPIN}')
    e(f's_cbranch_scc1 {label}')
    e(f'{label}_ok:')
e('v_lshlrev_b32 v4, 4, v0')
poll('L_pq', [f'buffer_load_dwordx4 v[32:35], v4, s[{S_WS}:{S_WS+3}], s{sT0} offen sc1',
              f'buffer_load_dwordx4 v[36:39], v4, s[{S_WS}:{S_WS+3}], s{sT0} offen offset:1024 sc1'],
     [33, 35, 37, 39])
e('v_lshlrev_b32 v5, 3, v0')
e(f'v_add_u32 v5, {QL}, v5')
e('ds_write2_b32 v5, v32, v34 offset0:0 offset1:1')
e('ds_write2_b32 v5, v36, v38 offset0:128 offset1:129')
e('s_waitcnt lgkmcnt(0)')
stamp(10)
e('s_barrier')
e('v_mul_u32_u24 v6, 3584, v3')
e('v_lshl_add_u32 v6, v2, 4, v6')
e(f's_lshl_b32 s{sT0}, s{sH}, 9')
e(f's_lshl_b32 s{sT1}, s{sS}, 4')
e(f's_add_u32 s{sT0}, s{sT0}, s{sT1}')
e(f's_mul_i32 s{sT0}, s{sT0}, 896')
for k in range(4):
    for t in range(4):
        d = 64 + (k*4+t)*4
        e(f'buffer_load_dwordx4 v[{d}:{d+3}], v6, s[{S_WO}:{S_WO+3}], s{sT0} offen offset:{k*896+t*256}')
e('s_barrier')
e('v_lshlrev_b32 v4, 12, v2')
e('v_lshl_add_u32 v4, v3, 5, v4')
e(f's_lshl_b32 s{sT0}, s{sH}, 17')
e(f's_lshl_b32 s{sT1}, s{sS}, 7')
e(f's_add_u32 s{sT0}, s{sT0}, s{sT1}')
e(f's_add_u32 s{sT0}, s{sT0}, {OG}')
e(f's_add_u32 s59, s{sT0}, 65536')
e('v_lshlrev_b32 v5, 4, v2')
e(f's_lshl_b32 s{sT1}, s{sH}, 10')
e(f's_lshr_b32 s3, s{sS}, 4')
e(f's_lshl_b32 s3, s3, 9')
e(f's_add_u32 s{sT1}, s{sT1}, s3')
e(f's_add_u32 s{sT1}, s{sT1}, {MLG}')
for r in range(128, 144): e(f'v_mov_b32 v{r}, 0')
e('s_barrier')
stamp(11)
W = f's[{S_WS}:{S_WS+3}]'
poll('L_po', [f'buffer_load_dwordx4 v[32:35], v4, {W}, s{sT0} offen sc1',
              f'buffer_load_dwordx4 v[36:39], v4, {W}, s{sT0} offen offset:16 sc1',
              f'buffer_load_dwordx4 v[40:43], v4, {W}, s59 offen sc1',
              f'buffer_load_dwordx4 v[44:47], v4, {W}, s59 offen offset:16 sc1',
              f'buffer_load_dwordx4 v[48:51], v5, {W}, s{sT1} offen sc1',
              f'buffer_load_dwordx4 v[52:55], v5, {W}, s{sT1} offen offset:256 sc1'],
     [33,35,37,39,41,43,45,47,49,51,53,55])
stamp(12)
def row_allreduce(op, regs):
    for sh in (8,4,2,1):
        for r in regs:
            e(f'{op}_dpp v{r}, v{r}, v{r} row_ror:{sh} row_mask:0xf bank_mask:0xf')
        if len(regs) < 3: e('s_nop 1')
e('v_max_f32 v20, v48, v52')
e('s_nop 1')
row_allreduce('v_max_f32', [20])
e('v_sub_f32 v21, v48, v20')
e('v_sub_f32 v22, v52, v20')
e('v_exp_f32 v21, v21')
e('v_exp_f32 v22, v22')
e('s_nop 0')
e('v_mul_f32 v23, v21, v50')
e('v_fma_f32 v23, v22, v54, v23')
e('v_mul_f32 v24, v21, v32')
e('v_mul_f32 v25, v21, v34')
e('v_mul_f32 v26, v21, v36')
e('v_mul_f32 v27, v21, v38')
e('v_fma_f32 v24, v22, v40, v24')
e('v_fma_f32 v25, v22, v42, v25')
e('v_fma_f32 v26, v22, v44, v26')
e('v_fma_f32 v27, v22, v46, v27')
row_allreduce('v_add_f32', [23,24,25,26,27])
e('v_rcp_f32 v23, v23')
e('s_nop 0')
for k in range(4):
    e(f'v_mul_f32 v{24+k}, v{24+k}, v23')
for k in range(4):
    e(f'v_cvt_pk_bf16_f32 v{24+k}, v{24+k}, v{24+k}')
for k in range(4):
    for j in range(4):
        e(f'v_and_b32 v{32+4*k+j}, v{24+k}, v{14+j}')
e('s_nop 1')
for k in range(4):
    for t in range(4):
        d = 64 + (k*4+t)*4
        e(f'v_mfma_f32_16x16x32_bf16 v[{128+4*t}:{131+4*t}], v[{32+4*k}:{35+4*k}], v[{d}:{d+3}], v[{128+4*t}:{131+4*t}]')
e('v_lshlrev_b32 v4, 2, v2')
e('v_and_b32 v5, 1, v3')
e('v_lshl_add_u32 v4, v5, 1, v4')
e('v_lshrrev_b32 v5, 1, v3')
e('v_add_u32 v4, v4, v5')
e('v_lshlrev_b32 v4, 12, v4')
e(f's_lshl_b32 s{sT0}, s{sBP}, 4')
e(f's_add_u32 s{sT0}, s{sT0}, {PG}')
e('v_cmp_lt_u32 vcc, 31, v0')
e('s_nop 4')
for t in range(4):
    b = 128 + 4*t
    o = 32 + 4*t
    e(f'v_cndmask_b32 v{o}, v{b}, v{b+2}, vcc')
    e(f'v_mov_b32 v{o+1}, s{sTAG}')
    e(f'v_cndmask_b32 v{o+2}, v{b+1}, v{b+3}, vcc')
    e(f'v_mov_b32 v{o+3}, s{sTAG}')
    e(f's_add_u32 s{sT1}, s{sT0}, {t*262144}')
    e(f'buffer_store_dwordx4 v[{o}:{o+3}], v4, {W}, s{sT1} offen sc1')
stamp(13)
e('s_cmp_ge_u32 s2, 224')
e('s_cbranch_scc1 L_comm_done')
e('v_lshlrev_b32 v4, 4, v0')
e(f's_lshl_b32 s{sT0}, s2, 12')
e(f's_add_u32 s{sT0}, s{sT0}, {PG}')
poll('L_pp', [f'buffer_load_dwordx4 v[{48+4*k}:{51+4*k}], v4, {W}, s{sT0} offen offset:{k*1024} sc1' for k in range(4)],
     [49,51,53,55,57,59,61,63])
stamp(14)
e('v_add_f32 v20, v48, v52')
e('v_add_f32 v21, v50, v54')
e('v_add_f32 v22, v56, v60')
e('v_add_f32 v23, v58, v62')
e('v_add_f32 v20, v20, v22')
e('v_add_f32 v21, v21, v23')
e('s_nop 1')
row_allreduce('v_add_f32', [20,21])
xg_reduce('v_add_f32', 20, 22)
xg_reduce('v_add_f32', 21, 22)
e('v_cvt_pk_bf16_f32 v20, v20, v21')
e(f's_lshl_b32 s{sT0}, s2, 2')
e('v_mov_b32 v4, 0')
e('s_mov_b64 exec, 1')
e(f'buffer_store_dword v20, v4, s[{S_OUT}:{S_OUT+3}], s{sT0} offen')
e('s_cmp_eq_u32 s2, 0')
e('s_cbranch_scc0 L_noepoch')
e(f'v_mov_b32 v21, s{sTAG}')
e(f'buffer_store_dword v21, v4, {W}, 0 offen offset:{EPOCH} sc1')
e('L_noepoch:')
e('s_mov_b64 exec, -1')
e('L_comm_done:')
stamp(15)
store_stamps([8,9,10,11,12,13,14,15], 8)
e('L_end:')
e('s_endpgm')
L.append('.section .rodata,"a"')
L.append('.p2align 6')
L.append(f'.amdhsa_kernel {NAME}')
L.append('  .amdhsa_next_free_vgpr 160')
L.append('  .amdhsa_next_free_sgpr 96')
L.append('  .amdhsa_accum_offset 160')
L.append('  .amdhsa_group_segment_fixed_size 0')
L.append('  .amdhsa_kernarg_size 64')
L.append('  .amdhsa_user_sgpr_count 2')
L.append('  .amdhsa_user_sgpr_kernarg_segment_ptr 1')
L.append('  .amdhsa_system_sgpr_workgroup_id_x 1')
L.append('.end_amdhsa_kernel')
open(sys.argv[1], 'w').write('\n'.join(L) + '\n')
```

```python
import sys
opts = dict(a.split('=') for a in sys.argv[2:])
def opt(k, d): return int(opts.get(k, str(d)))
STAMP = opt('stamp', 0); DBGST = opt('dbgst', 0); TIMED = STAMP or DBGST
MAXSPIN = opt('maxspin', 20000)
WK = opt('wk', 6); WV = opt('wv', 6)
PREA = opt('prea', 0); RSA = opt('rsa', 2)
PREQ = opt('preq', 0); RSQ = opt('rsq', 2)
PREO = opt('preo', 0); RSO = opt('rso', 2); FB = opt('fb', 8)
PREP = opt('prep', 16); RSP = opt('rsp', 2); NPP = opt('npp', 1); SLP = opt('slp', 3)
PC = opt('pc', 4)
NOC2 = opt('noc2', 0); NOQ = opt('noq', 0); NOWO = opt('nowo', 0); VSL = opt('vsl', 1); NOPT = opt('nopt', 0)
KREC = opt('krec', 3); VREC = opt('vrec', 3)

L = []
def e(s=''): L.append('    ' + s if s and not s.endswith(':') else s)
nt = ' nt'
EPOCH = 0
QA = 512 << 10
QI = 1 << 20
OI = 2 << 20
PI = 4 << 20
C2 = 8 << 20
STAMPS = 128 << 20
PL = 131072
QL = PL + 2048
ML = QL + 1024
FL = ML + 64
LDS_TOTAL = FL + 64

S_K, S_V, S_WQ, S_WO, S_WS, S_X, S_OUT = 20, 24, 28, 32, 36, 40, 44
sH, sS, sW, sTAG = 48, 49, 50, 51
sT0, sT1, sT2, sT3 = 52, 53, 54, 55
sC, sSPIN, sBP, sT4 = 56, 57, 58, 59
W = f's[{S_WS}:{S_WS+3}]'
def stamp(i):
    if TIMED: e(f's_memrealtime s[{60+2*i}:{61+2*i}]')
def lgk(n): return f's_waitcnt lgkmcnt({0 if TIMED else n})'
def srd(d, base, nbytes):
    e(f's_mov_b32 s{d}, s{base}')
    e(f's_and_b32 s{d+1}, s{base+1}, 0xffff')
    e(f's_mov_b32 s{d+2}, {nbytes}')
    e(f's_mov_b32 s{d+3}, 0x20000')
def store_stamps(pairs):
    if STAMP:
        e('s_waitcnt lgkmcnt(0)')
        e('s_mov_b64 exec, 1')
        e(f's_lshl_b32 s{sT0}, s2, 7')
        e(f's_add_u32 s{sT0}, s{sT0}, {STAMPS}')
        e(f'v_mov_b32 v2, 0')
        for i, slot in pairs:
            e(f'v_mov_b32 v4, s{60+2*i}')
            e(f'v_mov_b32 v5, s{61+2*i}')
            e(f'buffer_store_dwordx2 v[4:5], v2, {W}, s{sT0} offen offset:{slot*8}')
            e('s_nop 1')
        e('s_mov_b64 exec, -1')
    if DBGST:
        e('s_waitcnt lgkmcnt(0)')
        e('s_mov_b64 exec, 1')
        e('s_mov_b32 s4, s16')
        e('s_and_b32 s5, s17, 0xffff')
        e('s_mov_b32 s6, 256')
        e('s_mov_b32 s7, 0x20000')
        e(f'v_mov_b32 v2, 0')
        for i, slot in pairs:
            if slot == 0:
                e(f's_not_b32 s{sT0}, s{60+2*i}')
                e(f'v_mov_b32 v4, s{sT0}')
            else:
                e(f'v_mov_b32 v4, s{60+2*i}')
            e(f'buffer_atomic_umax v4, v2, s[4:7], 0 offen offset:{slot*4}')
            e('s_nop 1')
        e('s_mov_b64 exec, -1')
def mktag():
    e(f's_add_u32 s{sTAG}, s{sTAG}, 1')
    e(f's_and_b32 s{sT4}, s{sTAG}, 0xff')
    e(f's_cmp_eq_u32 s{sT4}, 0')
    e(f's_addc_u32 s{sTAG}, s{sTAG}, 0')
def masks():
    e('v_and_b32 v18, 1, v0')
    e('v_lshlrev_b32 v18, 4, v18')
    e('v_mov_b32 v19, 0xffff')
    e('v_lshlrev_b32 v19, v18, v19')
    e('v_bfe_u32 v18, v0, 1, 2')
    for j in range(4):
        e(f'v_cmp_eq_u32 vcc, {j}, v18')
        e('s_nop 1')
        e(f'v_cndmask_b32 v{14+j}, 0, v19, vcc')
    e('v_mov_b32 v18, 0xffffff00')
def xg_reduce(op, v, t):
    e(f'v_mov_b32 v{t}, v{v}')
    e('s_nop 1')
    e(f'v_permlane16_swap_b32 v{t}, v{v}')
    e('s_nop 1')
    e(f'{op} v{v}, v{v}, v{t}')
    e(f'v_mov_b32 v{t}, v{v}')
    e('s_nop 1')
    e(f'v_permlane32_swap_b32 v{t}, v{v}')
    e('s_nop 1')
    e(f'{op} v{v}, v{v}, v{t}')
def lds_spin(label, off, val, sl=1):
    e(f'v_mov_b32 v12, {FL+off}')
    e(f's_mov_b32 s{sSPIN}, 0')
    e(f'{label}:')
    e('ds_read_b32 v13, v12')
    e('s_waitcnt lgkmcnt(0)')
    e(f'v_readfirstlane_b32 s{sT4}, v13')
    e(f's_cmp_eq_u32 s{sT4}, {val}')
    e(f's_cbranch_scc1 {label}_ok')
    if sl: e(f's_sleep {sl}')
    e(f's_add_u32 s{sSPIN}, s{sSPIN}, 1')
    e(f's_cmp_lt_u32 s{sSPIN}, {MAXSPIN*20}')
    e(f's_cbranch_scc1 {label}')
    e(f'{label}_ok:')
def lds_inc(off):
    e(f'v_mov_b32 v12, {FL+off}')
    e('v_mov_b32 v13, 1')
    e('s_mov_b64 exec, 1')
    e('ds_add_u32 v12, v13')
    e('s_mov_b64 exec, -1')

NAME = 'standalone__gqa_block_cached__decode_kernel'
hdr = open('standalone__gqa_block_cached__decode.s.ref').read().split('\n')
for l in hdr:
    if l.startswith('; Override') : break
    L.append(l)
L.append(f'; @launch grid=(256,1,1) block=(576,1,1) lds={LDS_TOTAL}')
L.append('.amdgcn_target "amdgcn-amd-amdhsa--gfx950"')
L.append('.text')
L.append(f'.globl {NAME}')
L.append('.p2align 8')
L.append(f'.type {NAME},@function')
L.append(f'{NAME}:')
e('s_cmp_ge_u32 s2, 256')
e('s_cbranch_scc1 L_end')
e('s_load_dwordx16 s[4:19], s[0:1], 0')
stamp(0)
e('v_lshrrev_b32 v1, 6, v0')
e('v_and_b32 v0, 63, v0')
e(f'v_readfirstlane_b32 s{sW}, v1')
if opt('xmap',0):
    e(f's_lshr_b32 s{sH}, s2, 5')
    e(f's_and_b32 s{sS}, s2, 31')
else:
    e(f's_and_b32 s{sH}, s2, 7')
    e(f's_lshr_b32 s{sS}, s2, 3')
e('v_and_b32 v2, 15, v0')
e('v_lshrrev_b32 v3, 4, v0')
e(f's_lshl_b32 s{sT0}, s{sH}, 22')
e(f's_lshl_b32 s{sT1}, s{sS}, 17')
e(f's_add_u32 s{sT0}, s{sT0}, s{sT1}')
e(f's_cmp_eq_u32 s{sW}, 0')
e('s_cbranch_scc1 L_comm')
e(f's_cmp_ge_u32 s{sW}, 5')
e('s_cbranch_scc1 L_vw')

e(f's_sub_u32 s{sW}, s{sW}, 1')
e(f's_lshl_b32 s{sT1}, s{sW}, 15')
e(f's_add_u32 s{sT0}, s{sT0}, s{sT1}')
e('v_lshrrev_b32 v5, 5, v0')
e('v_and_b32 v4, 31, v0')
e('v_xor_b32 v4, v4, v5')
e('v_lshlrev_b32 v4, 4, v4')
e('v_lshl_add_u32 v4, v5, 9, v4')
e('s_waitcnt lgkmcnt(0)')
srd(S_K, 6, 33554432)
for j in range(32):
    if j % 4 == 0:
        e(f's_add_u32 s{sT2}, s{sT0}, {(j>>2)*4096}')
        e(f's_add_u32 m0, s{sT1}, {(j>>2)*4096}')
    x = ((2*j) & 15) << 4
    vr = 5 + (j & 1)
    e(f'v_xor_b32 v{vr}, {x}, v4')
    if j == WK:
        e('s_barrier')
        e(f's_mov_b32 s{sC}, 0x3db8aa3b')
        for k in range(4):
            e(f'v_add_u32 v{8+k}, {4*k}, v3')
            e(f'v_xor_b32 v{8+k}, v{8+k}, v2')
            e(f'v_lshlrev_b32 v{8+k}, 4, v{8+k}')
            e(f'v_lshl_add_u32 v{8+k}, v2, 9, v{8+k}')
            e(f'v_add_u32 v{8+k}, s{sT1}, v{8+k}')
        e('v_lshrrev_b32 v14, 3, v2')
        e('v_lshlrev_b32 v15, 9, v14')
        e('v_lshl_add_u32 v15, v3, 4, v15')
        e(f'v_add_u32 v15, {QL}, v15')
        for r in range(20, 36): e(f'v_mov_b32 v{r}, 0')
    if j >= WK: e(f's_waitcnt vmcnt({WK-1})')
    e(f'buffer_load_dwordx4 v{vr}, s[{S_K}:{S_K+3}], s{sT2} offen offset:{(j&3)*1024}{nt} lds')
lds_inc(0)
stamp(1)
e(f's_lshl_b32 s{sT2}, s{sW}, 9')
e('v_lshlrev_b32 v16, 8, v14')
e('v_lshl_add_u32 v16, v3, 4, v16')
e(f'v_add_u32 v16, s{sT2}, v16')
e(f'v_add_u32 v16, {PL}, v16')
e(f's_lshl_b32 s{sT2}, s{sW}, 4')
e('v_lshlrev_b32 v17, 3, v14')
e(f'v_add_u32 v17, s{sT2}, v17')
e(f'v_add_u32 v17, {ML}, v17')
lds_spin('L_kq', 4, 1, sl=VSL)
stamp(2)
for i in range(8):
    e(f'ds_read_b128 v[{64+4*i}:{67+4*i}], v15 offset:{i*64}')
e('s_waitcnt vmcnt(0)')
def kreads(T):
    b = 96 + (T&1)*32
    for i in range(8):
        e(f'ds_read_b128 v[{b+4*i}:{b+3+4*i}], v{8+(i&3)} offset:{T*8192+(i>>2)*256}')
kreads(0)
for T in range(4):
    b = 96 + (T&1)*32
    if T < 3: kreads(T+1)
    e(lgk(8) if T < 3 else 's_waitcnt lgkmcnt(0)')
    for i in range(8):
        e(f'v_mfma_f32_16x16x32_bf16 v[{20+4*T}:{23+4*T}], v[{b+4*i}:{b+3+4*i}], v[{64+4*i}:{67+4*i}], v[{20+4*T}:{23+4*T}]')
e('s_nop 7')
e('v_max3_f32 v36, v20, v21, v22')
e('v_max3_f32 v37, v23, v24, v25')
e('v_max3_f32 v36, v36, v26, v27')
e('v_max3_f32 v37, v37, v28, v29')
e('v_max3_f32 v36, v36, v30, v31')
e('v_max3_f32 v37, v37, v32, v33')
e('v_max3_f32 v36, v36, v34, v35')
e('v_max_f32 v36, v36, v37')
xg_reduce('v_max_f32', 36, 37)
e(f'v_mul_f32 v36, s{sC}, v36')
for r in range(20, 36): e(f'v_fma_f32 v{r}, v{r}, s{sC}, -v36')
for r in range(20, 36): e(f'v_exp_f32 v{r}, v{r}')
e('s_nop 0')
e('v_add_f32 v37, v20, v21')
e('v_add_f32 v38, v22, v23')
for r in range(24, 36, 2):
    e(f'v_add_f32 v37, v37, v{r}')
    e(f'v_add_f32 v38, v38, v{r+1}')
e('v_add_f32 v37, v37, v38')
for r in range(20, 36): e(f'v_cvt_pk_bf16_f32 v{r}, v{r}, v{r}')
e('s_mov_b32 exec_lo, 0x01010101')
e('s_mov_b32 exec_hi, 0x01010101')
for T in range(4):
    e(f'ds_write_b128 v16, v[{20+4*T}:{23+4*T}] offset:{T*64}')
e('s_mov_b64 exec, -1')
xg_reduce('v_add_f32', 37, 38)
e('s_mov_b64 exec, 0x101')
e('ds_write_b64 v17, v[36:37]')
e('s_mov_b64 exec, -1')
e('s_waitcnt lgkmcnt(0)')
lds_inc(8)
stamp(3)
if TIMED:
    e(f's_cmp_eq_u32 s{sW}, {KREC}')
    e('s_cbranch_scc0 L_kw_end')
    srd(S_WS, 18, 268435456)
    store_stamps([(0,0),(1,1),(2,2),(3,3)])
    e('L_kw_end:')
e('s_endpgm')

e('L_vw:')
e(f's_sub_u32 s{sW}, s{sW}, 5')
e(f's_lshl_b32 s{sT1}, s{sW}, 15')
e(f's_add_u32 s{sT0}, s{sT0}, s{sT1}')
e('v_lshlrev_b32 v7, 11, v3')
e('v_lshl_add_u32 v7, v2, 4, v7')
e('s_waitcnt lgkmcnt(0)')
srd(S_V, 8, 33554432)
srd(S_WS, 18, 268435456)
e(f's_load_dword s{sTAG}, s[18:19], {EPOCH}')
masks()
for r in range(20, 28): e(f'v_mov_b32 v{r}, 0')
e('v_lshrrev_b32 v8, 3, v2')
e('v_lshlrev_b32 v8, 8, v8')
e('v_lshl_add_u32 v8, v3, 4, v8')
e(f's_lshl_b32 s{sT2}, s{sW}, 9')
e(f'v_add_u32 v8, s{sT2}, v8')
e(f'v_add_u32 v8, {PL}, v8')
e('v_lshrrev_b32 v9, 5, v0')
e('v_lshlrev_b32 v9, 3, v9')
e(f'v_add_u32 v9, {ML}, v9')
e(f's_lshl_b32 s{sT2}, s{sW}, 4')
e(f'v_add_u32 v10, s{sT2}, v9')
e('v_lshrrev_b32 v11, 1, v3')
e('v_lshlrev_b32 v11, 10, v11')
e('v_lshl_add_u32 v11, v2, 5, v11')
e('v_and_b32 v4, 1, v3')
e('v_lshl_add_u32 v11, v4, 4, v11')
e(f's_lshl_b32 s{sT2}, s{sW}, 11')
e(f'v_add_u32 v11, s{sT2}, v11')
e('v_lshrrev_b32 v5, 3, v0')
e('v_and_b32 v6, 7, v0')
e('v_lshlrev_b32 v4, 6, v5')
e('v_lshl_add_u32 v4, v6, 4, v4')
e(f's_lshl_b32 s{sT2}, s{sW}, 9')
e(f'v_add_u32 v4, s{sT2}, v4')
e('v_lshlrev_b32 v6, 4, v6')
e('v_lshl_add_u32 v5, v5, 12, v6')
e(f'v_add_u32 v5, s{sT1}, v5')
e(f's_lshl_b32 s{sT3}, s{sH}, 17')
e(f's_lshl_b32 s{sT2}, s{sS}, 7')
e(f's_add_u32 s{sT3}, s{sT3}, s{sT2}')
e(f's_add_u32 s{sT3}, s{sT3}, {OI}')
e('s_mov_b32 s4, 0xf0f0f0f0')
e('s_mov_b32 s5, 0xf0f0f0f0')
e('s_waitcnt lgkmcnt(0)')
mktag()
e('s_barrier')
lds_spin('L_vk', 0, 4, sl=VSL)
stamp(1)
VB = 32
vlist = [(T, r, hf) for T in range(4) for r in range(4) for hf in range(2)]
for idx, (T, r, hf) in enumerate(vlist):
    if idx % 8 == 0: e(f's_add_u32 s{sT2}, s{sT0}, {T*8192}')
    if idx >= WV: e(f's_waitcnt vmcnt({WV-1})')
    d = VB + idx*4
    e(f'buffer_load_dwordx4 v[{d}:{d+3}], v7, s[{S_V}:{S_V+3}], s{sT2} offen offset:{r*512+hf*256}{nt}')
stamp(2)
lds_spin('L_vp', 8, 4, sl=VSL)
stamp(3)
for i in range(4):
    e(f'ds_read_b64 v[{160+2*i}:{161+2*i}], v9 offset:{i*16}')
e('ds_read_b64 v[28:29], v10')
e('s_waitcnt lgkmcnt(0)')
e('v_max3_f32 v30, v160, v162, v164')
e('v_max_f32 v30, v30, v166')
e(f'v_bfi_b32 v30, v18, v30, s{sTAG}')
for i in range(4): e(f'v_sub_f32 v{160+2*i}, v{160+2*i}, v30')
e('v_sub_f32 v19, v28, v30')
for i in range(4): e(f'v_exp_f32 v{160+2*i}, v{160+2*i}')
e('v_exp_f32 v19, v19')
e('s_nop 0')
e('v_mul_f32 v31, v160, v161')
e('v_fma_f32 v31, v162, v163, v31')
e('v_fma_f32 v31, v164, v165, v31')
e('v_fma_f32 v31, v166, v167, v31')
e(f's_lshr_b32 s{sT2}, s{sW}, 1')
e(f's_lshl_b32 s{sT2}, s{sT2}, 5')
e('ds_read_b128 v[160:163], v8')
e(f'v_readlane_b32 s6, v30, s{sT2}')
e(f'v_readlane_b32 s7, v31, s{sT2}')
ASET = [0, 28]
def ands(i):
    T, r = i // 4, i % 4
    pp = 160 + 4*(T & 1) + r
    a = ASET[i & 1]
    for j in range(4): e(f'v_and_b32 v{a+j}, v{pp}, v{14+j}')
e('s_waitcnt lgkmcnt(0)')
ands(0)
for i in range(16):
    T, r = i // 4, i % 4
    if r == 0 and T < 3:
        e(f'ds_read_b128 v[{160+4*((T+1)&1)}:{163+4*((T+1)&1)}], v8 offset:{(T+1)*64}')
    e(f's_waitcnt vmcnt({30-2*i})')
    e('s_nop 0')
    a = ASET[i & 1]
    for hf in range(2):
        d = VB + (i*2+hf)*4
        e(f'v_mfma_f32_16x16x32_bf16 v[{20+4*hf}:{23+4*hf}], v[{a}:{a+3}], v[{d}:{d+3}], v[{20+4*hf}:{23+4*hf}]')
    if i < 15:
        if r == 3: e('s_waitcnt lgkmcnt(0)')
        ands(i+1)
stamp(4)
e('s_nop 7')
for r in range(20, 28): e(f'v_mul_f32 v{r}, v{r}, v19')
e('ds_write_b128 v11, v[20:23]')
e('ds_write_b128 v11, v[24:27] offset:512')
lds_inc(12)
lds_spin('L_vf', 12, 4, sl=0)
for w in range(4):
    e(f'ds_read_b128 v[{32+4*w}:{35+4*w}], v4 offset:{w*2048}')
e('v_mov_b32 v48, s6')
e('v_mov_b32 v49, s7')
e('s_waitcnt lgkmcnt(0)')
for c in range(4):
    e(f'v_add_f32 v{32+c}, v{32+c}, v{36+c}')
    e(f'v_add_f32 v{40+c}, v{40+c}, v{44+c}')
for c in range(4):
    e(f'v_add_f32 v{32+c}, v{32+c}, v{40+c}')
e('v_cndmask_b32 v32, v32, v48, s[4:5]')
e('v_cndmask_b32 v33, v33, v49, s[4:5]')
for c in range(4):
    e(f'v_bfi_b32 v{32+c}, v18, v{32+c}, s{sTAG}')
e(f'buffer_store_dwordx4 v[32:35], v5, {W}, s{sT3} offen')
e(f's_add_u32 s{sT3}, s{sT3}, {C2}')
e(f'buffer_store_dwordx4 v[32:35], v5, {W}, s{sT3} offen sc1')
if TIMED:
    stamp(5)
    e('s_waitcnt vmcnt(0)')
    stamp(6)
    e(f's_cmp_eq_u32 s{sW}, {VREC}')
    e('s_cbranch_scc0 L_vw_end')
    store_stamps([(5,4),(2,5),(6,6),(4,7)])
    e('L_vw_end:')
e('s_endpgm')

e('L_comm:')
e('s_setprio 3')
e('v_lshlrev_b32 v6, 15, v3')
e('v_lshl_add_u32 v6, v2, 4, v6')
e('v_lshlrev_b32 v7, 3, v3')
e(f's_lshl_b32 s{sT0}, s{sS}, 17')
e(f's_lshl_b32 s{sT1}, s{sH}, 10')
e(f's_add_u32 s{sT0}, s{sT0}, s{sT1}')
e(f's_lshl_b32 s{sT2}, s{sS}, 5')
e('v_lshlrev_b32 v4, 4, v0')
e('s_waitcnt lgkmcnt(0)')
srd(S_X, 4, 896)
srd(S_WQ, 10, 3670016)
e(f'buffer_load_dwordx2 v[28:29], v7, s[{S_X}:{S_X+3}], s{sT2} offen')
e(f's_load_dword s{sTAG}, s[18:19], {EPOCH}')
for k in range(4):
    if k: e(f's_add_u32 s{sT0}, s{sT0}, 8192')
    for t in range(4):
        d = 64 + (k*4+t)*4
        if NOQ < 2: e(f'buffer_load_dwordx4 v[{d}:{d+3}], v6, s[{S_WQ}:{S_WQ+3}], s{sT0} offen offset:{t*256}{nt}')
srd(S_WS, 18, 268435456)
e(f's_lshl_b32 s{sT0}, s{sH}, 16')
e(f's_lshl_b32 s{sT1}, s{sS}, 6')
e(f's_add_u32 s96, s{sT1}, s{sT0}')
e(f's_lshl_b32 s{sT2}, s{sS}, 11')
e(f's_add_u32 s{sT0}, s{sT0}, s{sT2}')
e(f's_add_u32 s92, s{sT0}, {QA}')
e(f's_add_u32 s93, s{sT0}, {QI}')
if not NOPT:
    e(f'buffer_load_dwordx4 v[128:131], v4, {W}, s92 offen sc1')
    e(f'buffer_load_dwordx4 v[132:135], v4, {W}, s92 offen offset:1024 sc1')
    e(f'buffer_load_dwordx4 v[136:139], v4, {W}, s93 offen sc1')
    e(f'buffer_load_dwordx4 v[140:143], v4, {W}, s93 offen offset:1024 sc1')
e(f'v_mov_b32 v12, {FL}')
e('v_mov_b32 v20, 0')
e('v_mov_b32 v21, 0')
e('v_mov_b32 v22, 0')
e('v_mov_b32 v23, 0')
e('ds_write_b128 v12, v[20:23]')
e('s_waitcnt lgkmcnt(0)')
e('s_barrier')
srd(S_WO, 12, 3670016)
srd(S_OUT, 14, 896)
e(f's_lshl_b32 s{sBP}, s{sH}, 5')
e(f's_add_u32 s{sBP}, s{sBP}, s{sS}')
masks()
for r in range(48, 64): e(f'v_mov_b32 v{r}, 0')
e('v_lshrrev_b32 v1, 1, v2')
e('v_lshlrev_b32 v1, 11, v1')
e('v_and_b32 v10, 1, v2')
e('v_lshl_add_u32 v1, v10, 5, v1')
e('v_lshl_add_u32 v1, v3, 4, v1')
e('v_lshrrev_b32 v9, 2, v0')
e('v_lshlrev_b32 v9, 11, v9')
e('v_and_b32 v10, 3, v0')
e('v_lshl_add_u32 v9, v10, 4, v9')
e('v_mov_b32 v10, 0xffff0000')
e('v_lshlrev_b32 v5, 3, v0')
e(f'v_add_u32 v5, {QL}, v5')
e('s_mov_b32 s4, 0x01000100')
e('s_mov_b32 s5, 0x03020302')
e(('s_waitcnt vmcnt(16)' if NOPT else 's_waitcnt vmcnt(20)') if not NOQ else 's_waitcnt vmcnt(0)')
mktag()
if NOQ:
    e(f's_and_b32 s3, s{sTAG}, 0xff')
    e('v_mov_b32 v19, s3')
    e('s_branch L_skipq')
e(f's_and_b32 s3, s{sTAG}, 0xff')
e('v_mov_b32 v19, s3')
e('v_mov_b32 v7, v9')
e('v_perm_b32 v20, v28, v28, s4')
e('v_perm_b32 v21, v28, v28, s5')
e('v_perm_b32 v22, v29, v29, s4')
e('v_perm_b32 v23, v29, v29, s5')
for k in range(4):
    for j in range(4):
        e(f'v_and_b32 v{32+4*k+j}, v{20+k}, v{14+j}')
cnt = 16 if NOPT else 20
for k in range(4):
    cnt -= 4
    e(f's_waitcnt vmcnt({cnt})')
    for t in range(4):
        d = 64 + (k*4+t)*4
        e(f'v_mfma_f32_16x16x32_bf16 v[{48+4*t}:{51+4*t}], v[{32+4*k}:{35+4*k}], v[{d}:{d+3}], v[{48+4*t}:{51+4*t}]')
e(f's_add_u32 s{sT4}, s96, {QA}')
e('s_mov_b32 exec_hi, 0')
e('s_waitcnt vmcnt(0)')
e('s_nop 3')
for t in range(4):
    b = 48 + 4*t
    for r in range(4):
        e(f'v_bfi_b32 v{b+r}, v18, v{b+r}, s{sTAG}')
    e(f'buffer_store_dwordx4 v[{b}:{b+3}], v1, {W}, s{sT4} offen')
    if t < 3: e(f's_add_u32 s{sT4}, s{sT4}, 16384')

SOFT = opt('soft', 48)
def flush(level):
    e('s_mov_b64 s[98:99], exec')
    e('s_mov_b64 exec, -1')
    e('s_mov_b32 exec_hi, 0')
    e(f's_add_u32 s{sT4}, s96, {QA+C2}')
    for t in range(4):
        b = 48 + 4*t
        e(f'buffer_store_dwordx4 v[{b}:{b+3}], v1, {W}, s{sT4} offen sc1')
        if t < 3: e(f's_add_u32 s{sT4}, s{sT4}, 16384')
    if level >= 2:
        e('s_mov_b64 exec, -1')
        e(f's_add_u32 s{sT4}, s96, {QI+C2}')
        e(f'buffer_store_dwordx4 v[44:47], v7, {W}, s{sT4} offen sc1')
        e(f's_add_u32 s{sT4}, s96, {QI+C2+32768}')
        e(f'buffer_store_dwordx4 v[44:47], v7, {W}, s{sT4} offen sc1')
    e('s_mov_b64 exec, s[98:99]')
def poll(label, mkloads, base, nwords, sbase, level, pre=0, rs=0, c2=True):
    e('s_mov_b64 exec, -1')
    e(f's_mov_b32 s{sSPIN}, 0')
    if pre: e(f's_sleep {pre}')
    e(f's_mov_b32 s90, s{sbase}')
    e(f's_branch {label}_ld')
    e(f'{label}:')
    if rs: e(f's_sleep {rs}')
    e(f's_add_u32 s{sSPIN}, s{sSPIN}, 1')
    e(f's_cmp_lt_u32 s{sSPIN}, {SOFT}')
    e(f's_cbranch_scc1 {label}_ld')
    e(f's_and_b32 s91, s{sSPIN}, 15')
    e(f's_cmp_eq_u32 s91, {SOFT & 15}')
    e(f's_cbranch_scc0 {label}_nf')
    flush(level)
    e(f'{label}_nf:')
    if c2:
        e(f's_and_b32 s91, s{sSPIN}, 1')
        e(f's_mul_i32 s91, s91, {C2}')
        e(f's_add_u32 s90, s{sbase}, s91')
    e(f'{label}_ld:')
    for l in mkloads(base, 90): e(l)
    e('s_waitcnt vmcnt(0)')
    e(f'v_msad_u8 v12, v{base}, v19, 0')
    e(f'v_msad_u8 v13, v{base+1}, v19, 0')
    for t in range(2, nwords, 2):
        e(f'v_msad_u8 v12, v{base+t}, v19, v12')
        e(f'v_msad_u8 v13, v{base+t+1}, v19, v13')
    e('v_or_b32 v12, v12, v13')
    e('v_cmp_ne_u32 vcc, 0, v12')
    e(f's_cmp_ge_u32 s{sSPIN}, {MAXSPIN}')
    e(f's_cbranch_scc1 {label}_done')
    e('s_mov_b64 exec, vcc')
    e(f's_cbranch_execnz {label}')
    e(f'{label}_done:')
    e('s_mov_b64 exec, -1')

stamp(8)
poll('L_pa', lambda b, sr: [f'buffer_load_dwordx4 v[{b}:{b+3}], v4, {W}, s{sr} offen sc1',
                            f'buffer_load_dwordx4 v[{b+4}:{b+7}], v4, {W}, s{sr} offen offset:1024 sc1'],
     64, 8, 92, 1, pre=PREA, rs=RSA)
if TIMED: e(f's_mov_b32 s94, s{sSPIN}')
for c in range(4): e(f'v_add_f32 v{20+c}, v{64+c}, v{68+c}')
for sh in (4, 8):
    for r in range(20, 24):
        e(f'v_add_f32_dpp v{r}, v{r}, v{r} row_ror:{sh} row_mask:0xf bank_mask:0xf')
for sw in ('v_permlane16_swap_b32', 'v_permlane32_swap_b32'):
    for c in range(4): e(f'v_mov_b32 v{24+c}, v{20+c}')
    e('s_nop 1')
    for c in range(4): e(f'{sw} v{24+c}, v{20+c}')
    e('s_nop 1')
    for c in range(4): e(f'v_add_f32 v{20+c}, v{20+c}, v{24+c}')
for r in range(4):
    e(f'v_cvt_pk_bf16_f32 v{24+r}, v{20+r}, v{20+r}')
for r in range(4):
    e(f'v_and_or_b32 v{44+r}, v{24+r}, v10, s3')
e(f's_add_u32 s{sT4}, s96, {QI}')
e(f'buffer_store_dwordx4 v[44:47], v7, {W}, s{sT4} offen')
e(f's_add_u32 s{sT4}, s96, {QI+32768}')
e(f'buffer_store_dwordx4 v[44:47], v7, {W}, s{sT4} offen')
stamp(9)
poll('L_pq', lambda b, sr: [f'buffer_load_dwordx4 v[{b}:{b+3}], v4, {W}, s{sr} offen sc1',
                            f'buffer_load_dwordx4 v[{b+4}:{b+7}], v4, {W}, s{sr} offen offset:1024 sc1'],
     96, 8, 93, 2, pre=PREQ, rs=RSQ)
if TIMED:
    e(f's_lshl_b32 s{sSPIN}, s{sSPIN}, 6')
    e(f's_or_b32 s94, s94, s{sSPIN}')
e('s_mov_b32 s3, 0x07060302')
e(f'v_perm_b32 v20, v97, v96, s3')
e(f'v_perm_b32 v21, v99, v98, s3')
e(f'v_perm_b32 v22, v101, v100, s3')
e(f'v_perm_b32 v23, v103, v102, s3')
e(f'ds_write_b64 v5, v[20:21]')
e(f'ds_write_b64 v5, v[22:23] offset:512')
e('L_skipq:')
e(f'v_mov_b32 v12, {FL+4}')
e('v_mov_b32 v13, 1')
e('s_waitcnt lgkmcnt(0)')
e('ds_write_b32 v12, v13')
stamp(10)
WO = 104
e('v_mul_u32_u24 v6, 3584, v3')
e('v_lshl_add_u32 v6, v2, 4, v6')
e(f's_lshl_b32 s{sT0}, s{sH}, 9')
e(f's_lshl_b32 s{sT1}, s{sS}, 4')
e(f's_add_u32 s{sT0}, s{sT0}, s{sT1}')
e(f's_mul_i32 s{sT0}, s{sT0}, 896')
for k in range(4):
    for t in range(4):
        d = WO + (k*4+t)*4
        if not NOWO: e(f'buffer_load_dwordx4 v[{d}:{d+3}], v6, s[{S_WO}:{S_WO+3}], s{sT0} offen offset:{k*896+t*256}{nt}')
e('v_lshlrev_b32 v5, 7, v2')
e('v_lshl_add_u32 v4, v3, 4, v5')
e('v_add_u32 v5, 64, v5')
e(f's_lshl_b32 s92, s{sBP}, 12')
e(f's_add_u32 s92, s92, {OI}')
ACC = 88
for r in range(ACC, ACC+16): e(f'v_mov_b32 v{r}, 0')
if PC == 4:
    e('v_lshl_add_u32 v6, v2, 1, v3')
    e('v_lshlrev_b32 v6, 12, v6')
    tstride = 32*4096; bshift = 4
elif PC == 8:
    e('v_lshlrev_b32 v6, 13, v2')
    e('v_lshl_add_u32 v6, v3, 4, v6')
    tstride = 16*8192; bshift = 5
e(f's_lshl_b32 s{sT1}, s{sBP}, {bshift}')
e(f's_add_u32 s{sT1}, s{sT1}, {PI}')
stamp(11)
PB = 28
poll('L_po', lambda b, sr: [f'buffer_load_dwordx4 v[{b}:{b+3}], v4, {W}, s{sr} offen sc1',
              f'buffer_load_dwordx4 v[{b+4}:{b+7}], v4, {W}, s{sr} offen offset:2048 sc1',
              f'buffer_load_dwordx4 v[{b+8}:{b+11}], v5, {W}, s{sr} offen sc1',
              f'buffer_load_dwordx4 v[{b+12}:{b+15}], v5, {W}, s{sr} offen offset:2048 sc1'],
     PB, 16, 92, 2, pre=PREO, rs=RSO)
stamp(12)
if TIMED: e(f's_mov_b32 s95, s{sSPIN}')
b = PB
e(f'v_max_f32 v20, v{b+8}, v{b+12}')
e('s_nop 1')
for sh in (8,4,2,1):
    e(f'v_max_f32_dpp v20, v20, v20 row_ror:{sh} row_mask:0xf bank_mask:0xf')
    e('s_nop 1')
e(f'v_sub_f32 v21, v{b+8}, v20')
e(f'v_sub_f32 v22, v{b+12}, v20')
e('v_exp_f32 v21, v21')
e('v_exp_f32 v22, v22')
e('s_nop 0')
e(f'v_mul_f32 v23, v21, v{b+9}')
for k in range(4): e(f'v_mul_f32 v{24+k}, v21, v{b+k}')
e(f'v_fma_f32 v23, v22, v{b+13}, v23')
for k in range(4): e(f'v_fma_f32 v{24+k}, v22, v{b+4+k}, v{24+k}')
for sh in (8,4,2,1):
    for r in (23,24,25,26,27):
        e(f'v_add_f32_dpp v{r}, v{r}, v{r} row_ror:{sh} row_mask:0xf bank_mask:0xf')
e('v_rcp_f32 v23, v23')
e('s_nop 0')
for k in range(4):
    e(f'v_mul_f32 v{24+k}, v{24+k}, v23')
for k in range(4):
    e(f'v_cvt_pk_bf16_f32 v{24+k}, v{24+k}, v{24+k}')
AOP = [76, 80, 84, 8]
for k in range(4):
    for j in range(4):
        e(f'v_and_b32 v{AOP[k]+j}, v{24+k}, v{14+j}')
e('s_nop 1')
for t in range(4):
    for k in range(4):
        d = WO + (k*4+t)*4
        e(f'v_mfma_f32_16x16x32_bf16 v[{ACC+4*t}:{ACC+3+4*t}], v[{AOP[k]}:{AOP[k]+3}], v[{d}:{d+3}], v[{ACC+4*t}:{ACC+3+4*t}]')
e('s_mov_b32 exec_hi, 0')
for t in range(4):
    b = ACC + 4*t
    if t == 3: e('s_nop 2')
    for r in range(4):
        e(f'v_bfi_b32 v{b+r}, v18, v{b+r}, s{sTAG}')
    e(f's_add_u32 s{sT0}, s{sT1}, {t*tstride}')
    e(f'buffer_store_dwordx4 v[{b}:{b+3}], v6, {W}, s{sT0} offen sc1')
e('s_mov_b64 exec, -1')
stamp(13)
NF = 448 // PC
e(f's_cmp_ge_u32 s2, {NF}')
e('s_cbranch_scc1 L_comm_done')
e('v_lshlrev_b32 v4, 4, v0')
e(f's_mul_i32 s92, s2, {256*PC*4}')
e(f's_add_u32 s92, s92, {PI}')
NL = PC
PB2 = 104
def pl(b, sr):
    r = []
    for k in range(NL):
        off = k*1024
        assert off < 4096
        r.append(f'buffer_load_dwordx4 v[{b+4*k}:{b+3+4*k}], v4, {W}, s{sr} offen offset:{off} sc1')
    return r
poll('L_pp', pl, PB2, 4*NL, 92, 2, pre=PREP, rs=RSP, c2=False)
stamp(14)
srcs = [PB2+4*k for k in range(NL)]
for c in range(4):
    e(f'v_add_f32 v{8+c}, v{srcs[0]+c}, v{srcs[1]+c}')
for k in range(2, NL):
    for c in range(4):
        e(f'v_add_f32 v{8+c}, v{8+c}, v{srcs[k]+c}')
shs = (8,4,2,1) if PC == 4 else (8,4,2)
for sh in shs:
    for r in (8,9,10,11):
        e(f'v_add_f32_dpp v{r}, v{r}, v{r} row_ror:{sh} row_mask:0xf bank_mask:0xf')
for sw in ('v_permlane16_swap_b32', 'v_permlane32_swap_b32'):
    for c in range(4): e(f'v_mov_b32 v{20+c}, v{8+c}')
    e('s_nop 1')
    for c in range(4): e(f'{sw} v{20+c}, v{8+c}')
    e('s_nop 1')
    for c in range(4): e(f'v_add_f32 v{8+c}, v{8+c}, v{20+c}')
e('v_cvt_pk_bf16_f32 v8, v8, v9')
e('v_cvt_pk_bf16_f32 v9, v10, v11')
e(f's_lshl_b32 s{sT0}, s2, 3')
e('v_mov_b32 v4, 0')
e('s_mov_b64 exec, 1')
e(f'buffer_store_dwordx2 v[8:9], v4, s[{S_OUT}:{S_OUT+3}], s{sT0} offen')
e('s_cmp_eq_u32 s2, 0')
e('s_cbranch_scc0 L_noepoch')
e(f'v_mov_b32 v10, s{sTAG}')
e(f'buffer_store_dword v10, v4, {W}, 0 offen offset:{EPOCH} sc1')
e('L_noepoch:')
e('s_mov_b64 exec, -1')
e('L_comm_done:')
if TIMED:
    e('s_lshl_b32 s75, s95, 10')
    e('s_or_b32 s74, s94, s75')
    e('s_and_b32 s74, s74, 0xffff')
    e('s_mov_b32 s75, 0')
    store_stamps([(8,8),(9,9),(10,10),(11,11),(12,12),(13,13),(14,14),(7,15)])
e('L_end:')
e('s_endpgm')
L.append('.section .rodata,"a"')
L.append('.p2align 6')
L.append(f'.amdhsa_kernel {NAME}')
L.append('  .amdhsa_next_free_vgpr 168')
L.append('  .amdhsa_next_free_sgpr 102')
L.append('  .amdhsa_accum_offset 168')
L.append('  .amdhsa_group_segment_fixed_size 0')
L.append('  .amdhsa_kernarg_size 64')
L.append('  .amdhsa_user_sgpr_count 2')
L.append('  .amdhsa_user_sgpr_kernarg_segment_ptr 1')
L.append('  .amdhsa_system_sgpr_workgroup_id_x 1')
L.append('.end_amdhsa_kernel')
open(sys.argv[1], 'w').write('\n'.join(L) + '\n')
```

```python
import sys
opts = dict(a.split('=') for a in sys.argv[2:])
def opt(k, d): return int(opts.get(k, str(d)))
STAMP = opt('stamp', 0); DBGST = opt('dbgst', 0); TIMED = STAMP or DBGST
MAXSPIN = opt('maxspin', 20000)
WK = opt('wk', 6); WK0 = opt('wk0', 6); NK0 = opt('nk0', 0); WV = opt('wv', 12); NI = opt('ni', 20)
RSA = opt('rsa', 2); RSQ = opt('rsq', 2); RSO = opt('rso', 1)
PREP = opt('prep', 14); RSP = opt('rsp', 2)
SOFT = opt('soft', 48)
KREC = opt('krec', 3); VREC = opt('vrec', 3)
LSL = opt('lsl', 1)

L = []
def e(s=''): L.append('    ' + s if s and not s.endswith(':') else s)
nt = ' nt'
EPOCH = 0
QA = 512 << 10
QI = 1 << 20
OI = 2 << 20
PI = 4 << 20
C2 = 8 << 20
STAMPS = 128 << 20
PL = 131072
QL = PL + 2048
MB = QL + 1024
LB = MB + 32
MR = LB + 32
FL = MR + 16
WOL = 4096
RED = 0
LDS_TOTAL = FL + 48
assert FL % 16 == 0

S_K, S_V, S_WQ, S_WO, S_WS, S_X, S_OUT = 20, 24, 28, 32, 36, 40, 44
sH, sS, sW, sTAG = 48, 49, 50, 51
sT0, sT1, sT2, sT3 = 52, 53, 54, 55
sC, sSPIN, sBP, sT4 = 56, 57, 58, 59
sC2, sCOMM, sWOF = 97, 100, 101
W = f's[{S_WS}:{S_WS+3}]'
def stamp(i):
    if TIMED: e(f's_memrealtime s[{60+2*i}:{61+2*i}]')
def lgk(n): return f's_waitcnt lgkmcnt({0 if TIMED else n})'
def srd(d, base, nbytes):
    e(f's_mov_b32 s{d}, s{base}')
    e(f's_and_b32 s{d+1}, s{base+1}, 0xffff')
    e(f's_mov_b32 s{d+2}, {nbytes}')
    e(f's_mov_b32 s{d+3}, 0x20000')
DB = 0
def store_stamps(pairs):
    global DB
    if STAMP:
        e('s_waitcnt lgkmcnt(0)')
        e('s_mov_b64 exec, 1')
        e(f's_lshl_b32 s{sT0}, s2, 7')
        e(f's_add_u32 s{sT0}, s{sT0}, {STAMPS}')
        e(f'v_mov_b32 v2, 0')
        for i, slot in pairs:
            e(f'v_mov_b32 v4, s{60+2*i}')
            e(f'v_mov_b32 v5, s{61+2*i}')
            e(f'buffer_store_dwordx2 v[4:5], v2, {W}, s{sT0} offen offset:{slot*8}')
            e('s_nop 1')
        e('s_mov_b64 exec, -1')
    if DBGST:
        DB += 1
        e('s_cmp_eq_u32 s2, 0')
        e(f's_cbranch_scc0 L_dbg{DB}')
        e('s_waitcnt lgkmcnt(0)')
        e('s_mov_b64 exec, 1')
        e('s_mov_b32 s4, s16')
        e('s_and_b32 s5, s17, 0xffff')
        e('s_mov_b32 s6, 256')
        e('s_mov_b32 s7, 0x20000')
        e(f'v_mov_b32 v2, 0')
        for i, slot in pairs:
            e(f'v_mov_b32 v4, s{60+2*i}')
            e(f'buffer_store_dword v4, v2, s[4:7], 0 offen offset:{slot*4}')
            e('s_nop 1')
        e('s_mov_b64 exec, -1')
        e(f'L_dbg{DB}:')
def mktag():
    e(f's_add_u32 s{sTAG}, s{sTAG}, 1')
    e(f's_and_b32 s{sT4}, s{sTAG}, 0xff')
    e(f's_cmp_eq_u32 s{sT4}, 0')
    e(f's_addc_u32 s{sTAG}, s{sTAG}, 0')
    e(f's_bfe_u32 s{sC2}, s{sTAG}, 0x40008')
    e(f's_lshl_b32 s{sC2}, s{sC2}, 22')
    e(f's_add_u32 s{sC2}, s{sC2}, {C2}')
def masks():
    e('v_and_b32 v18, 1, v0')
    e('v_lshlrev_b32 v18, 4, v18')
    e('v_mov_b32 v19, 0xffff')
    e('v_lshlrev_b32 v19, v18, v19')
    e('v_bfe_u32 v18, v0, 1, 2')
    for j in range(4):
        e(f'v_cmp_eq_u32 vcc, {j}, v18')
        e('s_nop 1')
        e(f'v_cndmask_b32 v{14+j}, 0, v19, vcc')
    e('v_mov_b32 v18, 0xffffff00')
def xg_reduce(op, v, t):
    e(f'v_mov_b32 v{t}, v{v}')
    e('s_nop 1')
    e(f'v_permlane16_swap_b32 v{t}, v{v}')
    e('s_nop 1')
    e(f'{op} v{v}, v{v}, v{t}')
    e(f'v_mov_b32 v{t}, v{v}')
    e('s_nop 1')
    e(f'v_permlane32_swap_b32 v{t}, v{v}')
    e('s_nop 1')
    e(f'{op} v{v}, v{v}, v{t}')
def lds_spin(label, off, val, sl=1, ge=False, bound=None):
    e(f'v_mov_b32 v12, {FL+off}')
    e(f's_mov_b32 s{sSPIN}, 0')
    e(f'{label}:')
    e('ds_read_b32 v13, v12')
    e('s_waitcnt lgkmcnt(0)')
    e(f'v_readfirstlane_b32 s{sT4}, v13')
    e(f's_cmp_{"ge" if ge else "eq"}_u32 s{sT4}, {val}')
    e(f's_cbranch_scc1 {label}_ok')
    if sl: e(f's_sleep {sl}')
    e(f's_add_u32 s{sSPIN}, s{sSPIN}, 1')
    e(f's_cmp_lt_u32 s{sSPIN}, {bound if bound else MAXSPIN*20}')
    e(f's_cbranch_scc1 {label}')
    e(f'{label}_ok:')
def lds_inc(off):
    e(f'v_mov_b32 v12, {FL+off}')
    e('v_mov_b32 v13, 1')
    e('s_mov_b64 exec, 1')
    e('ds_add_u32 v12, v13')
    e('s_mov_b64 exec, -1')

NAME = 'standalone__gqa_block_cached__decode_kernel'
hdr = open('standalone__gqa_block_cached__decode.s.ref').read().split('\n')
for l in hdr:
    if l.startswith('; Override') : break
    L.append(l)
L.append(f'; @launch grid=(256,1,1) block=(576,1,1) lds={LDS_TOTAL}')
L.append('.amdgcn_target "amdgcn-amd-amdhsa--gfx950"')
L.append('.text')
L.append(f'.globl {NAME}')
L.append('.p2align 8')
L.append(f'.type {NAME},@function')
L.append(f'{NAME}:')
e('s_cmp_ge_u32 s2, 256')
e('s_cbranch_scc1 L_end')
e('s_load_dwordx16 s[4:19], s[0:1], 0')
stamp(0)
e('v_lshrrev_b32 v1, 6, v0')
e('v_and_b32 v0, 63, v0')
e(f'v_readfirstlane_b32 s{sW}, v1')
PF = opt('pf', 0)
if PF:
    e('s_getpc_b64 s[84:85]')
    e('L_pc:')
    e(f's_sub_u32 s84, s84, L_pc-{NAME}')
    e('s_subb_u32 s85, s85, 0')
    e('s_bfe_u32 s86, s2, 0x10003')
    e('s_mul_i32 s86, s86, 9')
    e(f's_add_u32 s86, s86, s{sW}')
    e('s_lshl_b32 s86, s86, 10')
    e('v_lshl_add_u32 v160, v0, 4, s86')
    e('v_min_u32 v160, (L_codeend-'+NAME+'-16) & 0xfffffff0, v160')
    e('global_load_dwordx4 v[164:167], v160, s[84:85]')
if opt('xmap', 0):
    e(f's_lshr_b32 s{sH}, s2, 5')
    e(f's_and_b32 s{sS}, s2, 31')
else:
    e(f's_and_b32 s{sH}, s2, 7')
    e(f's_lshr_b32 s{sS}, s2, 3')
e('v_and_b32 v2, 15, v0')
e('v_lshrrev_b32 v3, 4, v0')
e(f's_lshl_b32 s{sT0}, s{sH}, 22')
e(f's_lshl_b32 s{sT1}, s{sS}, 17')
e(f's_add_u32 s{sT0}, s{sT0}, s{sT1}')
e(f's_lshl_b32 s{sBP}, s{sH}, 5')
e(f's_add_u32 s{sBP}, s{sBP}, s{sS}')
e(f's_cmp_eq_u32 s{sW}, 0')
e('s_cbranch_scc1 L_comm')
e(f's_cmp_ge_u32 s{sW}, 5')
e('s_cbranch_scc1 L_vw')

e('s_barrier')
e(f's_sub_u32 s{sW}, s{sW}, 1')
e(f's_lshl_b32 s{sT1}, s{sW}, 15')
e(f's_add_u32 s{sT0}, s{sT0}, s{sT1}')
e('v_lshrrev_b32 v5, 5, v0')
e('v_and_b32 v4, 31, v0')
e('v_xor_b32 v4, v4, v5')
e('v_lshlrev_b32 v4, 4, v4')
e('v_lshl_add_u32 v4, v5, 9, v4')
ROT = opt('rot', 1)
if ROT:
    e(f's_lshl_b32 s91, s{sW}, 1')
    e(f's_add_u32 s91, s91, s{sS}')
    if ROT == 1: e(f's_add_u32 s91, s91, s{sH}')
    e(f's_and_b32 s90, s91, 1')
    e(f's_lshl_b32 s90, s90, 7')
    e(f'v_xor_b32 v4, s90, v4')
else:
    e('s_mov_b32 s91, 0')
e('s_mov_b32 s93, 0')
e('s_waitcnt lgkmcnt(0)')
srd(S_K, 6, 33554432)
e('L_kl:')
e('s_add_u32 s90, s91, s93')
e('s_and_b32 s90, s90, 7')
e('s_lshl_b32 s90, s90, 12')
e(f's_add_u32 s{sT2}, s{sT0}, s90')
e(f's_add_u32 m0, s{sT1}, s90')
for q in range(4):
    vr = 5 + (q & 1)
    e(f'v_xor_b32 v{vr}, {q*32}, v4')
    e(f's_waitcnt vmcnt({WK-1})')
    e(f'buffer_load_dwordx4 v{vr}, s[{S_K}:{S_K+3}], s{sT2} offen offset:{q*1024}{nt} lds')
e('v_xor_b32 v4, 0x80, v4')
e('s_add_u32 s93, s93, 1')
e('s_cmp_lt_u32 s93, 8')
e('s_cbranch_scc1 L_kl')
lds_inc(16)
stamp(1)
e(f's_load_dword s{sTAG}, s[18:19], {EPOCH}')
e(f's_mov_b32 s{sC}, 0x3db8aa3b')
if TIMED: srd(S_WS, 18, 268435456)
for k in range(4):
    e(f'v_add_u32 v{8+k}, {4*k}, v3')
    e(f'v_xor_b32 v{8+k}, v{8+k}, v2')
    e(f'v_lshlrev_b32 v{8+k}, 4, v{8+k}')
    e(f'v_lshl_add_u32 v{8+k}, v2, 9, v{8+k}')
    e(f'v_add_u32 v{8+k}, s{sT1}, v{8+k}')
e('v_lshrrev_b32 v40, 3, v2')
e('v_lshlrev_b32 v41, 9, v40')
e('v_lshl_add_u32 v41, v3, 4, v41')
e(f'v_add_u32 v41, {QL}, v41')
for r in range(20, 36): e(f'v_mov_b32 v{r}, 0')
e('v_mov_b32 v18, 0xffffff00')
e('s_waitcnt lgkmcnt(0)')
mktag()
e('v_lshlrev_b32 v42, 10, v40')
e('v_lshl_add_u32 v42, v3, 2, v42')
e(f's_lshl_b32 s{sT2}, s{sW}, 6')
e(f's_add_u32 s{sT2}, s{sT2}, {PL}')
e(f'v_add_u32 v42, s{sT2}, v42')
e('v_lshlrev_b32 v43, 4, v40')
e(f'v_add_u32 v43, {MB}, v43')
e(f's_lshl_b32 s{sT2}, s{sW}, 2')
e(f'v_add_u32 v44, s{sT2}, v43')
lds_spin('L_kq', 0, 1, sl=LSL)
stamp(2)
for i in range(8):
    e(f'ds_read_b128 v[{64+4*i}:{67+4*i}], v41 offset:{i*64}')
e('s_waitcnt vmcnt(0)')
def kreads(T):
    b = 96 + (T&1)*32
    for i in range(8):
        e(f'ds_read_b128 v[{b+4*i}:{b+3+4*i}], v{8+(i&3)} offset:{T*8192+(i>>2)*256}')
kreads(0)
for T in range(4):
    b = 96 + (T&1)*32
    if T < 3: kreads(T+1)
    e(lgk(8) if T < 3 else 's_waitcnt lgkmcnt(0)')
    for i in range(8):
        e(f'v_mfma_f32_16x16x32_bf16 v[{20+4*T}:{23+4*T}], v[{b+4*i}:{b+3+4*i}], v[{64+4*i}:{67+4*i}], v[{20+4*T}:{23+4*T}]')
e('s_nop 7')
e('v_max3_f32 v36, v20, v21, v22')
e('v_max3_f32 v37, v23, v24, v25')
e('v_max3_f32 v36, v36, v26, v27')
e('v_max3_f32 v37, v37, v28, v29')
e('v_max3_f32 v36, v36, v30, v31')
e('v_max3_f32 v37, v37, v32, v33')
e('v_max3_f32 v36, v36, v34, v35')
e('v_max_f32 v36, v36, v37')
xg_reduce('v_max_f32', 36, 37)
e('s_mov_b64 exec, 0x101')
e('ds_write_b32 v44, v36')
e('s_mov_b64 exec, -1')
lds_inc(4)
lds_spin('L_km', 4, 4, sl=0)
e('ds_read_b128 v[64:67], v43')
e('s_waitcnt lgkmcnt(0)')
e('v_max3_f32 v36, v64, v65, v66')
e('v_max_f32 v36, v36, v67')
e(f'v_mul_f32 v36, s{sC}, v36')
e(f'v_bfi_b32 v36, v18, v36, s{sTAG}')
for r in range(20, 36): e(f'v_fma_f32 v{r}, v{r}, s{sC}, -v36')
for r in range(20, 36): e(f'v_exp_f32 v{r}, v{r}')
e('s_nop 0')
e('v_add_f32 v37, v20, v21')
e('v_add_f32 v38, v22, v23')
for r in range(24, 36, 2):
    e(f'v_add_f32 v37, v37, v{r}')
    e(f'v_add_f32 v38, v38, v{r+1}')
e('v_add_f32 v37, v37, v38')
for r in range(20, 36): e(f'v_cvt_pk_bf16_f32 v{r}, v{r}, v{r}')
e('s_mov_b32 exec_lo, 0x01010101')
e('s_mov_b32 exec_hi, 0x01010101')
for T in range(4):
    for r in (0, 2):
        e(f'ds_write2_b32 v42, v{20+4*T+r}, v{21+4*T+r} offset0:{r*64+T*4} offset1:{(r+1)*64+T*4}')
e('s_mov_b64 exec, -1')
xg_reduce('v_add_f32', 37, 38)
e(f'v_add_u32 v44, {LB-MB}, v44')
e('v_lshlrev_b32 v43, 2, v40')
e(f'v_add_u32 v43, {MR}, v43')
e('s_mov_b64 exec, 0x101')
e('ds_write_b32 v44, v37')
e('ds_write_b32 v43, v36')
e('s_mov_b64 exec, -1')
e('s_waitcnt lgkmcnt(0)')
lds_inc(8)
stamp(3)
if TIMED:
    e(f's_cmp_eq_u32 s{sW}, {KREC}')
    e('s_cbranch_scc0 L_kw_end')
    store_stamps([(0,0),(1,1),(2,2),(3,3)] + ([(5,4),(6,5),(7,6)] if opt('kst',0) else []))
    e('L_kw_end:')
e('s_endpgm')

e('L_vw:')
e('s_barrier')
e(f's_sub_u32 s{sW}, s{sW}, 5')
e(f's_and_b32 s{sT1}, s{sW}, 1')
e(f's_lshr_b32 s{sT2}, s{sW}, 1')
e(f's_lshl_b32 s3, s{sT1}, 8')
e(f's_add_u32 s{sT0}, s{sT0}, s3')
e(f's_lshl_b32 s3, s{sT2}, 16')
e(f's_add_u32 s{sT0}, s{sT0}, s3')
e('v_lshlrev_b32 v7, 9, v3')
e('v_lshl_add_u32 v7, v2, 4, v7')
e('s_waitcnt lgkmcnt(0)')
srd(S_V, 8, 33554432)
srd(S_WS, 18, 268435456)
e(f's_load_dword s{sTAG}, s[18:19], {EPOCH}')
masks()
e('v_add_u32 v19, 4096, v7')
for r in range(20, 24): e(f'v_mov_b32 v{r}, 0')
e('v_lshrrev_b32 v4, 3, v2')
e('v_lshlrev_b32 v4, 10, v4')
e('v_lshl_add_u32 v4, v3, 8, v4')
e(f's_lshl_b32 s3, s{sT2}, 7')
e(f's_add_u32 s3, s3, {PL}')
e('v_add_u32 v4, s3, v4')
e('v_lshlrev_b32 v6, 4, v0')
e(f's_lshl_b32 s3, s{sT1}, 10')
e('v_add_u32 v6, s3, v6')
e('v_lshrrev_b32 v8, 1, v3')
e('v_lshrrev_b32 v9, 1, v2')
e('v_lshl_add_u32 v9, v8, 4, v9')
e('v_lshlrev_b32 v9, 12, v9')
e('v_and_b32 v10, 1, v2')
e('v_lshl_add_u32 v9, v10, 5, v9')
e('v_and_b32 v10, 1, v3')
e('v_lshl_add_u32 v9, v10, 4, v9')
e(f's_lshl_b32 s3, s{sT1}, 15')
e('v_add_u32 v5, s3, v9')
e(f'v_lshlrev_b32 v9, 4, v8')
e(f'v_add_u32 v9, {LB}, v9')
e(f'v_lshlrev_b32 v10, 2, v8')
e(f'v_add_u32 v10, {MR}, v10')
e(f's_lshl_b32 s{sT3}, s{sH}, 17')
e(f's_lshl_b32 s3, s{sS}, 7')
e(f's_add_u32 s{sT3}, s{sT3}, s3')
e(f's_add_u32 s{sT3}, s{sT3}, {OI}')
e('s_waitcnt lgkmcnt(0)')
mktag()
VB = 32
e(f's_lshl_b32 s91, s{sT2}, 2')
e(f's_add_u32 s91, s91, s{sS}')
if ROT == 1: e(f's_add_u32 s91, s91, s{sH}')
if not ROT: e('s_mov_b32 s91, 0')
def vaddr(i):
    if i % 4 == 0:
        e(f's_add_u32 s90, s91, {i>>2}')
        e(f's_and_b32 s90, s90, 7')
        e(f's_lshl_b32 s90, s90, 13')
        e(f's_add_u32 s94, s{sT0}, s90')
def vissue(i):
    d = VB + i*4
    off = (i & 3) * 2048
    if off < 4096: e(f'buffer_load_dwordx4 v[{d}:{d+3}], v7, s[{S_V}:{S_V+3}], s94 offen offset:{off}{nt}')
    else: e(f'buffer_load_dwordx4 v[{d}:{d+3}], v19, s[{S_V}:{S_V+3}], s94 offen offset:{off-4096}{nt}')
def vload(i):
    vaddr(i)
    if i >= WV: e(f's_waitcnt vmcnt({WV-1})')
    vissue(i)
PPS = [160, 164]
def ppread(q4):
    b = PPS[q4 & 1]
    e(f's_add_u32 s95, s91, {q4}')
    e(f's_and_b32 s95, s95, 7')
    e(f's_lshl_b32 s95, s95, 4')
    e(f'v_add_u32 v12, s95, v4')
    e(f'ds_read_b128 v[{b}:{b+3}], v12')
ASET = [0, 28]
def ands(i):
    pp = PPS[(i//4) & 1] + (i & 3)
    a = ASET[i & 1]
    for j in range(4): e(f'v_and_b32 v{a+j}, v{pp}, v{14+j}')
def pv(i, outstanding):
    if i % 4 == 0 and i//4 < 7: ppread(i//4 + 1)
    e(f's_waitcnt vmcnt({outstanding})')
    a = ASET[i & 1]
    d = VB + i*4
    if i % 4 == 3 and i < 31: e('s_waitcnt lgkmcnt(0)')
    else: e('s_nop 0')
    e(f'v_mfma_f32_16x16x32_bf16 v[20:23], v[{a}:{a+3}], v[{d}:{d+3}], v[20:23]')
    if i < 31: ands(i+1)
e(f's_cmp_eq_u32 s{sT2}, 1')
e('s_cbranch_scc1 L_v2')
lds_spin('L_v1k', 16, opt('kthr', 1), sl=LSL, ge=True)
for i in range(32): vload(i)
lds_inc(20)
lds_spin('L_v1p', 8, 4, sl=LSL)
ppread(0)
e('s_waitcnt lgkmcnt(0)')
ands(0)
for i in range(32): pv(i, 31 - i)
e('s_nop 7')
e('ds_write_b128 v6, v[20:23]')
e('s_waitcnt lgkmcnt(0)')
lds_inc(24)
srd(S_WO, 12, 3670016)
e(f's_lshl_b32 s{sT0}, s{sBP}, 4')
e(f's_mul_i32 s{sT0}, s{sT0}, 896')
e(f's_mul_i32 s3, s{sT1}, {7*1024}')
e(f's_add_u32 s{sT0}, s{sT0}, s3')
e(f's_add_u32 s3, s3, {WOL}')
e('v_mov_b32 v7, v6')
e(f's_lshl_b32 s{sT2}, s{sT1}, 10')
e(f'v_subrev_u32 v7, s{sT2}, v7')
lds_spin('L_v1w', 12, opt('wothr', 2), sl=LSL, ge=True)
e('s_mov_b32 m0, s3')
e('s_nop 0')
for jj in range(4):
    e(f'buffer_load_dwordx4 v7, s[{S_WO}:{S_WO+3}], s{sT0} offen offset:{jj*1024}{nt} lds')
e(f's_add_u32 s3, s3, 4096')
e(f's_add_u32 s{sT0}, s{sT0}, 4096')
e('s_mov_b32 m0, s3')
e('s_nop 0')
for jj in range(3):
    e(f'buffer_load_dwordx4 v7, s[{S_WO}:{S_WO+3}], s{sT0} offen offset:{jj*1024}{nt} lds')
e('s_waitcnt vmcnt(0)')
lds_inc(28)
e('s_endpgm')
e('L_v2:')
lds_spin('L_v2k', 20, opt('vthr', 1), sl=LSL, ge=True)
stamp(1)
for i in range(NI): vload(i)
lds_spin('L_v2p', 8, 4, sl=LSL)
stamp(3)
e('ds_read_b128 v[160:163], v9')
e('ds_read_b32 v24, v10')
e('s_waitcnt lgkmcnt(0)')
e('v_add_f32 v160, v160, v161')
e('v_add_f32 v162, v162, v163')
e('v_add_f32 v25, v160, v162')
e('v_mov_b32 v26, v24')
e('v_mov_b32 v27, v24')
for r in range(24, 28): e(f'v_bfi_b32 v{r}, v18, v{r}, s{sTAG}')
e(f'buffer_store_dwordx4 v[24:27], v5, {W}, s{sT3} offen offset:64')
e(f's_add_u32 s3, s{sT3}, s{sC2}')
MLLATE = opt('mllate', 1)
if not MLLATE: e(f'buffer_store_dwordx4 v[24:27], v5, {W}, s3 offen offset:64 sc1')
NX = 1 if MLLATE else 2
ppread(0)
e('s_waitcnt lgkmcnt(0)')
ands(0)
done = 0
rem = 32 - NI
per = -(-NI // max(rem, 1))
def vload2(i):
    vaddr(i)
    k = WV - 1
    if i - WV < NI: k_ = WV - 1 + (NX if (i - WV + 1) <= NI - 1 + 1 and True else 0)
    extra = NX if (i - WV) <= NI - 1 else 0
    e(f's_waitcnt vmcnt({WV-1+extra})')
    vissue(i)
for i in range(NI, 32):
    vload2(i)
    for k in range(per):
        if done < NI:
            pv(done, (i - done) + NX)
            done += 1
lds_inc(12)
stamp(2)
lds_spin('L_v2r', 24, 2, sl=0)
e('ds_read_b128 v[8:11], v6')
while done < 32:
    extra = NX if done <= NI - 1 else 0
    pv(done, 31 - done + extra)
    done += 1
stamp(4)
e('s_waitcnt lgkmcnt(0)')
e('s_nop 6')
for r in range(4): e(f'v_add_f32 v{20+r}, v{20+r}, v{8+r}')
for r in range(4): e(f'v_bfi_b32 v{20+r}, v18, v{20+r}, s{sTAG}')
e(f'buffer_store_dwordx4 v[20:23], v5, {W}, s{sT3} offen')
CDLY = opt('cdly', 1)
if CDLY:
    if TIMED: stamp(5)
    lds_spin('L_v2c', 32, 1, sl=4, ge=True, bound=opt('cbound', 40))
e(f'buffer_store_dwordx4 v[20:23], v5, {W}, s3 offen sc1')
if MLLATE: e(f'buffer_store_dwordx4 v[24:27], v5, {W}, s3 offen offset:64 sc1')
if TIMED:
    if not CDLY: stamp(5)
    e(f's_cmp_eq_u32 s{sW}, {VREC}')
    e('s_cbranch_scc0 L_end')
    store_stamps([(4,7)] if opt('kst',0) else [(3,4),(2,5),(4,7),(5,6)])
e('s_endpgm')

e('L_comm:')
e('s_setprio 3')
e(f'v_mov_b32 v12, {FL}')
for r in range(20, 24): e(f'v_mov_b32 v{r}, 0')
e('ds_write_b128 v12, v[20:23]')
e('ds_write_b128 v12, v[20:23] offset:16')
e('ds_write_b128 v12, v[20:23] offset:32')
e('s_waitcnt lgkmcnt(0)')
e('s_barrier')
e('v_lshlrev_b32 v6, 15, v3')
e('v_lshl_add_u32 v6, v2, 4, v6')
e('v_lshlrev_b32 v7, 3, v3')
e(f's_lshl_b32 s{sT0}, s{sS}, 17')
e(f's_lshl_b32 s{sT1}, s{sH}, 10')
e(f's_add_u32 s{sT0}, s{sT0}, s{sT1}')
e(f's_lshl_b32 s{sT2}, s{sS}, 5')
e('v_lshlrev_b32 v4, 4, v0')
e('s_waitcnt lgkmcnt(0)')
srd(S_X, 4, 896)
srd(S_WQ, 10, 3670016)
e(f'buffer_load_dwordx2 v[28:29], v7, s[{S_X}:{S_X+3}], s{sT2} offen')
e(f's_load_dword s{sTAG}, s[18:19], {EPOCH}')
for k in range(4):
    if k: e(f's_add_u32 s{sT0}, s{sT0}, 8192')
    for t in range(4):
        d = 64 + (k*4+t)*4
        e(f'buffer_load_dwordx4 v[{d}:{d+3}], v6, s[{S_WQ}:{S_WQ+3}], s{sT0} offen offset:{t*256}{nt if opt("wqnt",1) else ""}' if not opt('nowq',0) else 's_nop 0')
srd(S_WS, 18, 268435456)
e(f's_lshl_b32 s{sT0}, s{sH}, 16')
e(f's_lshl_b32 s{sT1}, s{sS}, 6')
e(f's_add_u32 s96, s{sT1}, s{sT0}')
e(f's_lshl_b32 s{sT2}, s{sS}, 11')
e(f's_add_u32 s{sT0}, s{sT0}, s{sT2}')
e(f's_add_u32 s92, s{sT0}, {QA}')
e(f's_add_u32 s93, s{sT0}, {QI}')
PTP = opts.get('ptpol','nt').replace('plain','')
for (rr, ss, oo) in ((128,92,0),(132,92,1024),(136,93,0),(140,93,1024)):
    e(f'buffer_load_dwordx4 v[{rr}:{rr+3}], v4, {W}, s{ss} offen offset:{oo} {PTP}' if not opt('nopt',0) else 's_nop 0')
srd(S_OUT, 14, 896)
masks()
for r in range(48, 64): e(f'v_mov_b32 v{r}, 0')
e('v_lshrrev_b32 v1, 1, v2')
e('v_lshlrev_b32 v1, 11, v1')
e('v_and_b32 v10, 1, v2')
e('v_lshl_add_u32 v1, v10, 5, v1')
e('v_lshl_add_u32 v1, v3, 4, v1')
e('v_lshrrev_b32 v9, 2, v0')
e('v_lshlrev_b32 v9, 11, v9')
e('v_and_b32 v10, 3, v0')
e('v_lshl_add_u32 v9, v10, 4, v9')
e('v_mov_b32 v10, 0xffff0000')
e('v_lshlrev_b32 v5, 3, v0')
e(f'v_add_u32 v5, {QL}, v5')
e('s_mov_b32 s4, 0x01000100')
e('s_mov_b32 s5, 0x03020302')
e('s_waitcnt vmcnt(20) lgkmcnt(0)')
mktag()
if opt('noq',0):
    e(f's_and_b32 s3, s{sTAG}, 0xff')
    e('v_mov_b32 v19, s3')
    e('s_waitcnt vmcnt(0)')
    e('s_branch L_skipq')
e(f's_and_b32 s3, s{sTAG}, 0xff')
e('v_mov_b32 v19, s3')
e('v_mov_b32 v7, v9')
e('v_perm_b32 v20, v28, v28, s4')
e('v_perm_b32 v21, v28, v28, s5')
e('v_perm_b32 v22, v29, v29, s4')
e('v_perm_b32 v23, v29, v29, s5')
for k in range(4):
    for j in range(4):
        e(f'v_and_b32 v{32+4*k+j}, v{20+k}, v{14+j}')
cnt = 20
for k in range(4):
    cnt -= 4
    e(f's_waitcnt vmcnt({cnt})')
    for t in range(4):
        d = 64 + (k*4+t)*4
        e(f'v_mfma_f32_16x16x32_bf16 v[{48+4*t}:{51+4*t}], v[{32+4*k}:{35+4*k}], v[{d}:{d+3}], v[{48+4*t}:{51+4*t}]')
e(f's_add_u32 s{sT4}, s96, {QA}')
e('s_mov_b32 exec_hi, 0')
e('s_waitcnt vmcnt(0)')
e('s_nop 3')
for t in range(4):
    b = 48 + 4*t
    for r in range(4):
        e(f'v_bfi_b32 v{b+r}, v18, v{b+r}, s{sTAG}')
    e(f'buffer_store_dwordx4 v[{b}:{b+3}], v1, {W}, s{sT4} offen')
    if t < 3: e(f's_add_u32 s{sT4}, s{sT4}, 16384')
e('s_mov_b64 exec, -1')
stamp(8)

def flush(level):
    e('s_mov_b32 exec_hi, 0')
    e(f's_add_u32 s{sT4}, s96, s{sC2}')
    e(f's_add_u32 s91, s{sT4}, {QA}')
    for t in range(4):
        b = 48 + 4*t
        e(f'buffer_store_dwordx4 v[{b}:{b+3}], v1, {W}, s91 offen sc1')
        if t < 3: e(f's_add_u32 s91, s91, 16384')
    e('s_mov_b64 exec, -1')
    if level >= 2:
        e(f's_add_u32 s91, s{sT4}, {QI}')
        e(f'buffer_store_dwordx4 v[44:47], v7, {W}, s91 offen sc1')
        e(f's_add_u32 s91, s{sT4}, {QI+32768}')
        e(f'buffer_store_dwordx4 v[44:47], v7, {W}, s91 offen sc1')
FP = opts.get('fp','nt').replace('+',' ')
def poll(label, mkloads, base, nwords, sbase, level, pre=0, rs=0, c2=True, hook=None):
    def check():
        e(f'v_msad_u8 v12, v{base}, v19, 0')
        e(f'v_msad_u8 v13, v{base+1}, v19, 0')
        for t in range(2, nwords, 2):
            e(f'v_msad_u8 v12, v{base+t}, v19, v12')
            e(f'v_msad_u8 v13, v{base+t+1}, v19, v13')
        e('v_or_b32 v12, v12, v13')
        e('v_cmp_ne_u32 vcc, 0, v12')
    e(f's_mov_b32 s{sSPIN}, 0')
    if pre: e(f's_sleep {pre}')
    e(f's_branch {label}_ld')
    e(f'{label}:')
    if rs: e(f's_sleep {rs}')
    e(f's_add_u32 s{sSPIN}, s{sSPIN}, 1')
    e(f's_cmp_ge_u32 s{sSPIN}, {SOFT}')
    e(f's_cbranch_scc1 {label}_slow')
    e(f'{label}_ld:')
    for l in mkloads(base, sbase, FP if c2 else 'sc1'): e(l)
    if hook: hook('f')
    e('s_waitcnt vmcnt(0)')
    check()
    e(f's_cbranch_vccnz {label}')
    e(f's_branch {label}_done')
    e(f'{label}_slow:')
    e(f's_and_b32 s91, s{sSPIN}, 15')
    e(f's_cmp_eq_u32 s91, {SOFT & 15}')
    e(f's_cbranch_scc0 {label}_nf')
    flush(level)
    e(f'{label}_nf:')
    e(f's_mov_b32 s90, s{sbase}')
    if c2:
        e(f's_bitcmp1_b32 s{sSPIN}, 0')
        e(f's_cbranch_scc0 {label}_c1')
        e(f's_add_u32 s90, s{sbase}, s{sC2}')
        e(f'{label}_c1:')
    for l in mkloads(base, 90, 'sc1'): e(l)
    if hook: hook('s')
    e('s_waitcnt vmcnt(0)')
    check()
    e(f's_cbranch_vccz {label}_done')
    e('s_sleep 2')
    e(f's_add_u32 s{sSPIN}, s{sSPIN}, 1')
    e(f's_cmp_lt_u32 s{sSPIN}, {MAXSPIN}')
    e(f's_cbranch_scc1 {label}_slow')
    e(f'{label}_done:')

poll('L_pa', lambda b, sr, FP: [f'buffer_load_dwordx4 v[{b}:{b+3}], v4, {W}, s{sr} offen {FP}',
                            f'buffer_load_dwordx4 v[{b+4}:{b+7}], v4, {W}, s{sr} offen offset:1024 {FP}']
                            + ([f'buffer_load_dwordx4 v[136:139], v4, {W}, s93 offen {FP}',
                               f'buffer_load_dwordx4 v[140:143], v4, {W}, s93 offen offset:1024 {FP}'] if opt('keepb', 1) else []),
     64, 8, 92, 1, rs=RSA)
for c in range(4): e(f'v_add_f32 v{20+c}, v{64+c}, v{68+c}')
for sh in (4, 8):
    for r in range(20, 24):
        e(f'v_add_f32_dpp v{r}, v{r}, v{r} row_ror:{sh} row_mask:0xf bank_mask:0xf')
for sw in ('v_permlane16_swap_b32', 'v_permlane32_swap_b32'):
    for c in range(4): e(f'v_mov_b32 v{24+c}, v{20+c}')
    e('s_nop 1')
    for c in range(4): e(f'{sw} v{24+c}, v{20+c}')
    e('s_nop 1')
    for c in range(4): e(f'v_add_f32 v{20+c}, v{20+c}, v{24+c}')
for r in range(4):
    e(f'v_cvt_pk_bf16_f32 v{24+r}, v{20+r}, v{20+r}')
for r in range(4):
    e(f'v_and_or_b32 v{44+r}, v{24+r}, v10, s3')
e(f's_add_u32 s{sT4}, s96, {QI}')
e(f'buffer_store_dwordx4 v[44:47], v7, {W}, s{sT4} offen')
e(f's_add_u32 s{sT4}, s96, {QI+32768}')
e(f'buffer_store_dwordx4 v[44:47], v7, {W}, s{sT4} offen')
stamp(9)
poll('L_pq', lambda b, sr, FP: [f'buffer_load_dwordx4 v[{b}:{b+3}], v4, {W}, s{sr} offen {FP}',
                            f'buffer_load_dwordx4 v[{b+4}:{b+7}], v4, {W}, s{sr} offen offset:1024 {FP}'],
     96, 8, 93, 2, rs=RSQ)
e('s_mov_b32 s3, 0x07060302')
e(f'v_perm_b32 v20, v97, v96, s3')
e(f'v_perm_b32 v21, v99, v98, s3')
e(f'v_perm_b32 v22, v101, v100, s3')
e(f'v_perm_b32 v23, v103, v102, s3')
e(f'ds_write_b64 v5, v[20:21]')
e(f'ds_write_b64 v5, v[22:23] offset:512')
e('L_skipq:')
e(f'v_mov_b32 v12, {FL}')
e('v_mov_b32 v13, 1')
e('s_waitcnt lgkmcnt(0)')
e('ds_write_b32 v12, v13')
if opt('latepoll',0): e('s_sleep 127')
stamp(10)
PT = opts.get('ptp', '')
if PT:
    e('s_cmp_ge_u32 s2, 112')
    e('s_cbranch_scc1 L_nopt')
    e(f's_lshl_b32 s92, s2, 12')
    e(f's_add_u32 s92, s92, {PI}')
    for k in range(4):
        e(f'buffer_load_dwordx4 v[{104+4*k}:{107+4*k}], v4, {W}, s92 offen offset:{k*1024} {PT.replace("+"," ").replace("plain","")}')
    e('L_nopt:')
WO = 104
e('v_mul_u32_u24 v6, 3584, v3')
e('v_lshl_add_u32 v6, v2, 4, v6')
e(f'v_add_u32 v6, {WOL}, v6')
e('v_lshlrev_b32 v5, 7, v2')
e('v_lshl_add_u32 v4, v3, 4, v5')
e('v_add_u32 v5, 64, v5')
e(f's_lshl_b32 s92, s{sBP}, 12')
e(f's_add_u32 s92, s92, {OI}')
ACC = 88
for r in range(ACC, ACC+16): e(f'v_mov_b32 v{r}, 0')
PLA = opt('pla', 0)
e('v_lshl_add_u32 v8, v2, 1, v3')
e(f'v_lshlrev_b32 v8, {4 if PLA else 12}, v8')
e(f's_lshl_b32 s95, s{sBP}, {11 if PLA else 4}')
e(f's_add_u32 s95, s95, {PI}')
e(f's_mov_b32 s{sWOF}, 0')
e(f'v_mov_b32 v9, {FL+28}')
def wo_loads():
    for k in range(4):
        for t in range(4):
            d = WO + (k*4+t)*4
            e(f'ds_read_b128 v[{d}:{d+3}], v6 offset:{k*896+t*256}')
def wo_hook(sfx):
    e(f's_cmp_eq_u32 s{sWOF}, 1')
    e(f's_cbranch_scc1 L_wo_skip{sfx}')
    e('ds_read_b32 v10, v9')
    e('s_waitcnt lgkmcnt(0)')
    e(f'v_readfirstlane_b32 s91, v10')
    e(f's_cmp_ge_u32 s91, 2')
    e(f's_cbranch_scc0 L_wo_skip{sfx}')
    wo_loads()
    e(f's_mov_b32 s{sWOF}, 1')
    e(f'L_wo_skip{sfx}:')
PB = 28
poll('L_pm', lambda b, sr, FP: [f'buffer_load_dwordx4 v[{b}:{b+3}], v5, {W}, s{sr} offen {FP}',
              f'buffer_load_dwordx4 v[{b+4}:{b+7}], v5, {W}, s{sr} offen offset:2048 {FP}',
              ] + ([f'buffer_load_dwordx4 v[36:39], v4, {W}, s{sr} offen {FP}',
                    f'buffer_load_dwordx4 v[40:43], v4, {W}, s{sr} offen offset:2048 {FP}'] if opt('keepv', 1) else []),
     PB, 8, 92, 2, rs=opt('rsm', 1), hook=wo_hook)
e(f'v_max_f32 v20, v{PB}, v{PB+4}')
e('s_nop 1')
for sh in (8,4,2,1):
    e(f'v_max_f32_dpp v20, v20, v20 row_ror:{sh} row_mask:0xf bank_mask:0xf')
    e('s_nop 1')
e(f'v_sub_f32 v21, v{PB}, v20')
e(f'v_sub_f32 v22, v{PB+4}, v20')
e('v_exp_f32 v21, v21')
e('v_exp_f32 v22, v22')
e('s_nop 0')
e(f'v_mul_f32 v23, v21, v{PB+1}')
e(f'v_fma_f32 v23, v22, v{PB+5}, v23')
e('s_nop 1')
for sh in (8,4,2,1):
    e(f'v_add_f32_dpp v23, v23, v23 row_ror:{sh} row_mask:0xf bank_mask:0xf')
    e('s_nop 1')
e('v_rcp_f32 v23, v23')
e('s_nop 0')
e('v_mul_f32 v10, v21, v23')
e('v_mul_f32 v11, v22, v23')
e(f's_cmp_eq_u32 s{sWOF}, 1')
e('s_cbranch_scc1 L_wo_ok')
lds_spin('L_wow', 28, 2, sl=1)
wo_loads()
e('L_wo_ok:')
def vl(b, sr, FP):
    return [f'buffer_load_dwordx4 v[{b}:{b+3}], v4, {W}, s{sr} offen {FP}',
            f'buffer_load_dwordx4 v[{b+4}:{b+7}], v4, {W}, s{sr} offen offset:2048 {FP}']
VB2 = 36
poll('L_po', vl, VB2, 8, 92, 2, rs=RSO)
for k in range(4): e(f'v_mul_f32 v{24+k}, v10, v{VB2+k}')
for k in range(4): e(f'v_fma_f32 v{24+k}, v11, v{VB2+4+k}, v{24+k}')
stamp(12)
for sh in (8,4,2,1):
    for r in (24,25,26,27):
        e(f'v_add_f32_dpp v{r}, v{r}, v{r} row_ror:{sh} row_mask:0xf bank_mask:0xf')
for k in range(4):
    e(f'v_cvt_pk_bf16_f32 v{24+k}, v{24+k}, v{24+k}')
AOP = [64, 68, 72, 76]
for k in range(4):
    for j in range(4):
        e(f'v_and_b32 v{AOP[k]+j}, v{24+k}, v{14+j}')
e('s_waitcnt lgkmcnt(0)')
e('s_nop 0')
for t in range(4):
    for k in range(4):
        d = WO + (k*4+t)*4
        e(f'v_mfma_f32_16x16x32_bf16 v[{ACC+4*t}:{ACC+3+4*t}], v[{AOP[k]}:{AOP[k]+3}], v[{d}:{d+3}], v[{ACC+4*t}:{ACC+3+4*t}]')
e('s_mov_b32 exec_hi, 0')
for t in range(4):
    bb = ACC + 4*t
    if t == 3: e('s_nop 2')
    for r in range(4):
        e(f'v_bfi_b32 v{bb+r}, v18, v{bb+r}, s{sTAG}')
    if t: e(f's_add_u32 s95, s95, {512 if PLA else 32*4096}')
    e(f'buffer_store_dwordx4 v[{bb}:{bb+3}], v8, {W}, s95 offen sc1')
e('s_mov_b64 exec, -1')
if CDLY:
    e(f'v_mov_b32 v12, {FL+32}')
    e('v_mov_b32 v13, 1')
    e('ds_write_b32 v12, v13')
stamp(13)
NF = 112
e(f's_cmp_ge_u32 s2, {NF}')
e('s_cbranch_scc1 L_comm_done')
PB2 = 104
if PLA:
    e('v_lshlrev_b32 v4, 11, v0')
    e('v_add_u32 v5, 0x20000, v4')
    e('v_add_u32 v6, 0x40000, v4')
    e('v_add_u32 v28, 0x60000, v4')
    e(f's_lshl_b32 s92, s2, 4')
else:
    e('v_lshlrev_b32 v4, 4, v0')
    e(f's_lshl_b32 s92, s2, 12')
e(f's_add_u32 s92, s92, {PI}')
def pl(b, sr, FP):
    if PLA: return [f'buffer_load_dwordx4 v[{b+4*k}:{b+3+4*k}], v{(4,5,6,28)[k]}, {W}, s{sr} offen sc1' for k in range(4)]
    return [f'buffer_load_dwordx4 v[{b+4*k}:{b+3+4*k}], v4, {W}, s{sr} offen offset:{k*1024} sc1' for k in range(4)]
poll('L_pp', pl, PB2, 16, 92, 2, pre=PREP, rs=RSP, c2=False)
stamp(14)
for c in range(4):
    e(f'v_add_f32 v{8+c}, v{PB2+c}, v{PB2+4+c}')
    e(f'v_add_f32 v{20+c}, v{PB2+8+c}, v{PB2+12+c}')
for c in range(4):
    e(f'v_add_f32 v{8+c}, v{8+c}, v{20+c}')
for sh in (8,4,2,1):
    for r in (8,9,10,11):
        e(f'v_add_f32_dpp v{r}, v{r}, v{r} row_ror:{sh} row_mask:0xf bank_mask:0xf')
for sw in ('v_permlane16_swap_b32', 'v_permlane32_swap_b32'):
    for c in range(4): e(f'v_mov_b32 v{20+c}, v{8+c}')
    e('s_nop 1')
    for c in range(4): e(f'{sw} v{20+c}, v{8+c}')
    e('s_nop 1')
    for c in range(4): e(f'v_add_f32 v{8+c}, v{8+c}, v{20+c}')
e('v_cvt_pk_bf16_f32 v8, v8, v9')
e('v_cvt_pk_bf16_f32 v9, v10, v11')
e(f's_lshl_b32 s{sT0}, s2, 3')
e('v_mov_b32 v4, 0')
e('s_mov_b64 exec, 1')
e(f'buffer_store_dwordx2 v[8:9], v4, s[{S_OUT}:{S_OUT+3}], s{sT0} offen')
e('s_cmp_eq_u32 s2, 0')
e('s_cbranch_scc0 L_noepoch')
e(f'v_mov_b32 v10, s{sTAG}')
e(f'buffer_store_dword v10, v4, {W}, 0 offen offset:{EPOCH} sc1')
e('L_noepoch:')
e('s_mov_b64 exec, -1')
e('L_comm_done:')
if opt('enddly',0): e(f's_sleep {opt("enddly",0)}')
if TIMED:
    store_stamps([(8,8),(9,9),(10,10),(12,12),(13,13),(14,14)])
e('L_end:')
e('s_endpgm')
e('L_codeend:')
L.append('.section .rodata,"a"')
L.append('.p2align 6')
L.append(f'.amdhsa_kernel {NAME}')
L.append('  .amdhsa_next_free_vgpr 168')
L.append('  .amdhsa_next_free_sgpr 102')
L.append('  .amdhsa_accum_offset 168')
L.append('  .amdhsa_group_segment_fixed_size 0')
L.append('  .amdhsa_kernarg_size 64')
L.append('  .amdhsa_user_sgpr_count 2')
L.append('  .amdhsa_user_sgpr_kernarg_segment_ptr 1')
L.append('  .amdhsa_system_sgpr_workgroup_id_x 1')
L.append('.end_amdhsa_kernel')
open(sys.argv[1], 'w').write('\n'.join(L) + '\n')
```

```python
import sys
opts = dict(a.split('=') for a in sys.argv[2:])
def opt(k, d): return int(opts.get(k, str(d)))
STAMP = opt('stamp', 0); DBGST = opt('dbgst', 0); TIMED = STAMP or DBGST
MAXSPIN = opt('maxspin', 20000)
WK = opt('wk', 6); WK0 = opt('wk0', 6); NK0 = opt('nk0', 0); WV = opt('wv', 12); NI = opt('ni', 24)
RSA = opt('rsa', 2); RSQ = opt('rsq', 2); RSO = opt('rso', 1)
PREP = opt('prep', 14); RSP = opt('rsp', 2)
SOFT = opt('soft', 48)
KREC = opt('krec', 3); VREC = opt('vrec', 3)
LSL = opt('lsl', 1)

L = []
def e(s=''): L.append('    ' + s if s and not s.endswith(':') else s)
nt = ' nt'
EPOCH = 0
QA = 512 << 10
QI = 1 << 20
OI = 2 << 20
PI = 4 << 20
C2 = 8 << 20
STAMPS = 128 << 20
PL = 131072
QL = PL + 2048
MB = QL + 1024
LB = MB + 32
MR = LB + 32
FL = MR + 16
WOL = 4096
RED = 0
LDS_TOTAL = FL + 48
assert FL % 16 == 0

S_K, S_V, S_WQ, S_WO, S_WS, S_X, S_OUT = 20, 24, 28, 32, 36, 40, 44
sH, sS, sW, sTAG = 48, 49, 50, 51
sT0, sT1, sT2, sT3 = 52, 53, 54, 55
sC, sSPIN, sBP, sT4 = 56, 57, 58, 59
sC2, sCOMM, sWOF = 97, 100, 101
W = f's[{S_WS}:{S_WS+3}]'
def stamp(i):
    if TIMED: e(f's_memrealtime s[{60+2*i}:{61+2*i}]')
def lgk(n): return f's_waitcnt lgkmcnt({0 if TIMED else n})'
def srd(d, base, nbytes):
    e(f's_mov_b32 s{d}, s{base}')
    e(f's_and_b32 s{d+1}, s{base+1}, 0xffff')
    e(f's_mov_b32 s{d+2}, {nbytes}')
    e(f's_mov_b32 s{d+3}, 0x20000')
DB = 0
def store_stamps(pairs):
    global DB
    if STAMP:
        e('s_waitcnt lgkmcnt(0)')
        e('s_mov_b64 exec, 1')
        e(f's_lshl_b32 s{sT0}, s2, 7')
        e(f's_add_u32 s{sT0}, s{sT0}, {STAMPS}')
        e(f'v_mov_b32 v2, 0')
        for i, slot in pairs:
            e(f'v_mov_b32 v4, s{60+2*i}')
            e(f'v_mov_b32 v5, s{61+2*i}')
            e(f'buffer_store_dwordx2 v[4:5], v2, {W}, s{sT0} offen offset:{slot*8}')
            e('s_nop 1')
        e('s_mov_b64 exec, -1')
    if DBGST:
        DB += 1
        e('s_cmp_eq_u32 s2, 0')
        e(f's_cbranch_scc0 L_dbg{DB}')
        e('s_waitcnt lgkmcnt(0)')
        e('s_mov_b64 exec, 1')
        e('s_mov_b32 s4, s16')
        e('s_and_b32 s5, s17, 0xffff')
        e('s_mov_b32 s6, 256')
        e('s_mov_b32 s7, 0x20000')
        e(f'v_mov_b32 v2, 0')
        for i, slot in pairs:
            e(f'v_mov_b32 v4, s{60+2*i}')
            e(f'buffer_store_dword v4, v2, s[4:7], 0 offen offset:{slot*4}')
            e('s_nop 1')
        e('s_mov_b64 exec, -1')
        e(f'L_dbg{DB}:')
def mktag():
    e(f's_add_u32 s{sTAG}, s{sTAG}, 1')
    e(f's_and_b32 s{sT4}, s{sTAG}, 0xff')
    e(f's_cmp_eq_u32 s{sT4}, 0')
    e(f's_addc_u32 s{sTAG}, s{sTAG}, 0')
    e(f's_bfe_u32 s{sC2}, s{sTAG}, 0x40008')
    e(f's_lshl_b32 s{sC2}, s{sC2}, 22')
    e(f's_add_u32 s{sC2}, s{sC2}, {C2}')
def masks():
    e('v_and_b32 v18, 1, v0')
    e('v_lshlrev_b32 v18, 4, v18')
    e('v_mov_b32 v19, 0xffff')
    e('v_lshlrev_b32 v19, v18, v19')
    e('v_bfe_u32 v18, v0, 1, 2')
    for j in range(4):
        e(f'v_cmp_eq_u32 vcc, {j}, v18')
        e('s_nop 1')
        e(f'v_cndmask_b32 v{14+j}, 0, v19, vcc')
    e('v_mov_b32 v18, 0xffffff00')
def xg_reduce(op, v, t):
    e(f'v_mov_b32 v{t}, v{v}')
    e('s_nop 1')
    e(f'v_permlane16_swap_b32 v{t}, v{v}')
    e('s_nop 1')
    e(f'{op} v{v}, v{v}, v{t}')
    e(f'v_mov_b32 v{t}, v{v}')
    e('s_nop 1')
    e(f'v_permlane32_swap_b32 v{t}, v{v}')
    e('s_nop 1')
    e(f'{op} v{v}, v{v}, v{t}')
def lds_spin(label, off, val, sl=1, ge=False, bound=None):
    e(f'v_mov_b32 v12, {FL+off}')
    e(f's_mov_b32 s{sSPIN}, 0')
    e(f'{label}:')
    e('ds_read_b32 v13, v12')
    e('s_waitcnt lgkmcnt(0)')
    e(f'v_readfirstlane_b32 s{sT4}, v13')
    e(f's_cmp_{"ge" if ge else "eq"}_u32 s{sT4}, {val}')
    e(f's_cbranch_scc1 {label}_ok')
    if sl: e(f's_sleep {sl}')
    e(f's_add_u32 s{sSPIN}, s{sSPIN}, 1')
    e(f's_cmp_lt_u32 s{sSPIN}, {bound if bound else MAXSPIN*20}')
    e(f's_cbranch_scc1 {label}')
    e(f'{label}_ok:')
def lds_inc(off):
    e(f'v_mov_b32 v12, {FL+off}')
    e('v_mov_b32 v13, 1')
    e('s_mov_b64 exec, 1')
    e('ds_add_u32 v12, v13')
    e('s_mov_b64 exec, -1')

NAME = 'standalone__gqa_block_cached__decode_kernel'
hdr = open('standalone__gqa_block_cached__decode.s.ref').read().split('\n')
for l in hdr:
    if l.startswith('; Override') : break
    L.append(l)
L.append(f'; @launch grid=(256,1,1) block=(576,1,1) lds={LDS_TOTAL}')
for l in """
 GQA decode (q-proj, attention over the KV cache, out-proj) as one persistent launch, one workgroup per CU.
 Workgroup b: kv head h = b & 7, key split s = b >> 3 (256 keys). 9 waves:
   wave 0     comm : q-projection slice (16 rows of wq), q reduce/broadcast inside the head group, later the
                     split combine, the out-projection slice (16 rows of wo) and the final column reduce
   waves 1-4  K    : stream K into LDS (LDS-DMA, xor-swizzled), scores by MFMA, true max, exp, P table in LDS
   waves 5-8  V    : stream V into registers in two phases, P*V by MFMA (one-hot A operand), publish partials
 Cross-workgroup messages are dwords whose low byte is a per-launch tag (epoch word in d_ws + 1).
 Messages inside a head group are stored plainly (fast when the group shares an XCD L2); write-through
 copies in a second region make every placement correct. The last hop always uses write-through stores.
""".strip('\n').split('\n'): L.append(';' + l)
L.append('.amdgcn_target "amdgcn-amd-amdhsa--gfx950"')
L.append('.text')
L.append(f'.globl {NAME}')
L.append('.p2align 8')
L.append(f'.type {NAME},@function')
L.append(f'{NAME}:')
e('s_cmp_ge_u32 s2, 256')
e('s_cbranch_scc1 L_end')
e('s_load_dwordx16 s[4:19], s[0:1], 0')
stamp(0)
e('v_lshrrev_b32 v1, 6, v0')
e('v_and_b32 v0, 63, v0')
e(f'v_readfirstlane_b32 s{sW}, v1')
PF = opt('pf', 0)
if PF:
    e('s_getpc_b64 s[84:85]')
    e('L_pc:')
    e(f's_sub_u32 s84, s84, L_pc-{NAME}')
    e('s_subb_u32 s85, s85, 0')
    e('s_bfe_u32 s86, s2, 0x10003')
    e('s_mul_i32 s86, s86, 9')
    e(f's_add_u32 s86, s86, s{sW}')
    e('s_lshl_b32 s86, s86, 10')
    e('v_lshl_add_u32 v160, v0, 4, s86')
    e('v_min_u32 v160, (L_codeend-'+NAME+'-16) & 0xfffffff0, v160')
    e('global_load_dwordx4 v[164:167], v160, s[84:85]')
if opt('xmap', 0):
    e(f's_lshr_b32 s{sH}, s2, 5')
    e(f's_and_b32 s{sS}, s2, 31')
else:
    e(f's_and_b32 s{sH}, s2, 7')
    e(f's_lshr_b32 s{sS}, s2, 3')
e('v_and_b32 v2, 15, v0')
e('v_lshrrev_b32 v3, 4, v0')
e(f's_lshl_b32 s{sT0}, s{sH}, 22')
e(f's_lshl_b32 s{sT1}, s{sS}, 17')
e(f's_add_u32 s{sT0}, s{sT0}, s{sT1}')
e(f's_lshl_b32 s{sBP}, s{sH}, 5')
e(f's_add_u32 s{sBP}, s{sBP}, s{sS}')
e(f's_cmp_eq_u32 s{sW}, 0')
e('s_cbranch_scc1 L_comm')
e(f's_cmp_ge_u32 s{sW}, 5')
e('s_cbranch_scc1 L_vw')

e('s_barrier')
e(f's_sub_u32 s{sW}, s{sW}, 1')
e(f's_lshl_b32 s{sT1}, s{sW}, 15')
e(f's_add_u32 s{sT0}, s{sT0}, s{sT1}')
e('v_lshrrev_b32 v5, 5, v0')
e('v_and_b32 v4, 31, v0')
e('v_xor_b32 v4, v4, v5')
e('v_lshlrev_b32 v4, 4, v4')
e('v_lshl_add_u32 v4, v5, 9, v4')
ROT = opt('rot', 1)
if ROT:
    e(f's_lshl_b32 s91, s{sW}, 1')
    e(f's_add_u32 s91, s91, s{sS}')
    if ROT == 1: e(f's_add_u32 s91, s91, s{sH}')
    e(f's_and_b32 s90, s91, 1')
    e(f's_lshl_b32 s90, s90, 7')
    e(f'v_xor_b32 v4, s90, v4')
else:
    e('s_mov_b32 s91, 0')
e('s_mov_b32 s93, 0')
e('s_waitcnt lgkmcnt(0)')
srd(S_K, 6, 33554432)
e('L_kl:')
e('s_add_u32 s90, s91, s93')
e('s_and_b32 s90, s90, 7')
e('s_lshl_b32 s90, s90, 12')
e(f's_add_u32 s{sT2}, s{sT0}, s90')
e(f's_add_u32 m0, s{sT1}, s90')
for q in range(4):
    vr = 5 + (q & 1)
    e(f'v_xor_b32 v{vr}, {q*32}, v4')
    e(f's_waitcnt vmcnt({WK-1})')
    e(f'buffer_load_dwordx4 v{vr}, s[{S_K}:{S_K+3}], s{sT2} offen offset:{q*1024}{nt} lds')
e('v_xor_b32 v4, 0x80, v4')
e('s_add_u32 s93, s93, 1')
e('s_cmp_lt_u32 s93, 8')
e('s_cbranch_scc1 L_kl')
lds_inc(16)
stamp(1)
e(f's_load_dword s{sTAG}, s[18:19], {EPOCH}')
e(f's_mov_b32 s{sC}, 0x3db8aa3b')
if TIMED: srd(S_WS, 18, 268435456)
for k in range(4):
    e(f'v_add_u32 v{8+k}, {4*k}, v3')
    e(f'v_xor_b32 v{8+k}, v{8+k}, v2')
    e(f'v_lshlrev_b32 v{8+k}, 4, v{8+k}')
    e(f'v_lshl_add_u32 v{8+k}, v2, 9, v{8+k}')
    e(f'v_add_u32 v{8+k}, s{sT1}, v{8+k}')
e('v_lshrrev_b32 v40, 3, v2')
e('v_lshlrev_b32 v41, 9, v40')
e('v_lshl_add_u32 v41, v3, 4, v41')
e(f'v_add_u32 v41, {QL}, v41')
for r in range(20, 36): e(f'v_mov_b32 v{r}, 0')
e('v_mov_b32 v18, 0xffffff00')
e('s_waitcnt lgkmcnt(0)')
mktag()
e('v_lshlrev_b32 v42, 10, v40')
e('v_lshl_add_u32 v42, v3, 2, v42')
e(f's_lshl_b32 s{sT2}, s{sW}, 6')
e(f's_add_u32 s{sT2}, s{sT2}, {PL}')
e(f'v_add_u32 v42, s{sT2}, v42')
e('v_lshlrev_b32 v43, 4, v40')
e(f'v_add_u32 v43, {MB}, v43')
e(f's_lshl_b32 s{sT2}, s{sW}, 2')
e(f'v_add_u32 v44, s{sT2}, v43')
lds_spin('L_kq', 0, 1, sl=LSL)
stamp(2)
for i in range(8):
    e(f'ds_read_b128 v[{64+4*i}:{67+4*i}], v41 offset:{i*64}')
e('s_waitcnt vmcnt(0)')
def kreads(T):
    b = 96 + (T&1)*32
    for i in range(8):
        e(f'ds_read_b128 v[{b+4*i}:{b+3+4*i}], v{8+(i&3)} offset:{T*8192+(i>>2)*256}')
kreads(0)
for T in range(4):
    b = 96 + (T&1)*32
    if T < 3: kreads(T+1)
    e(lgk(8) if T < 3 else 's_waitcnt lgkmcnt(0)')
    for i in range(8):
        e(f'v_mfma_f32_16x16x32_bf16 v[{20+4*T}:{23+4*T}], v[{b+4*i}:{b+3+4*i}], v[{64+4*i}:{67+4*i}], v[{20+4*T}:{23+4*T}]')
e('s_nop 7')
e('v_max3_f32 v36, v20, v21, v22')
e('v_max3_f32 v37, v23, v24, v25')
e('v_max3_f32 v36, v36, v26, v27')
e('v_max3_f32 v37, v37, v28, v29')
e('v_max3_f32 v36, v36, v30, v31')
e('v_max3_f32 v37, v37, v32, v33')
e('v_max3_f32 v36, v36, v34, v35')
e('v_max_f32 v36, v36, v37')
xg_reduce('v_max_f32', 36, 37)
e('s_mov_b64 exec, 0x101')
e('ds_write_b32 v44, v36')
e('s_mov_b64 exec, -1')
lds_inc(4)
lds_spin('L_km', 4, 4, sl=0)
e('ds_read_b128 v[64:67], v43')
e('s_waitcnt lgkmcnt(0)')
e('v_max3_f32 v36, v64, v65, v66')
e('v_max_f32 v36, v36, v67')
e(f'v_mul_f32 v36, s{sC}, v36')
e(f'v_bfi_b32 v36, v18, v36, s{sTAG}')
for r in range(20, 36): e(f'v_fma_f32 v{r}, v{r}, s{sC}, -v36')
for r in range(20, 36): e(f'v_exp_f32 v{r}, v{r}')
e('s_nop 0')
e('v_add_f32 v37, v20, v21')
e('v_add_f32 v38, v22, v23')
for r in range(24, 36, 2):
    e(f'v_add_f32 v37, v37, v{r}')
    e(f'v_add_f32 v38, v38, v{r+1}')
e('v_add_f32 v37, v37, v38')
for r in range(20, 36): e(f'v_cvt_pk_bf16_f32 v{r}, v{r}, v{r}')
e('s_mov_b32 exec_lo, 0x01010101')
e('s_mov_b32 exec_hi, 0x01010101')
for T in range(4):
    for r in (0, 2):
        e(f'ds_write2_b32 v42, v{20+4*T+r}, v{21+4*T+r} offset0:{r*64+T*4} offset1:{(r+1)*64+T*4}')
e('s_mov_b64 exec, -1')
xg_reduce('v_add_f32', 37, 38)
e(f'v_add_u32 v44, {LB-MB}, v44')
e('v_lshlrev_b32 v43, 2, v40')
e(f'v_add_u32 v43, {MR}, v43')
e('s_mov_b64 exec, 0x101')
e('ds_write_b32 v44, v37')
e('ds_write_b32 v43, v36')
e('s_mov_b64 exec, -1')
e('s_waitcnt lgkmcnt(0)')
lds_inc(8)
stamp(3)
if TIMED:
    e(f's_cmp_eq_u32 s{sW}, {KREC}')
    e('s_cbranch_scc0 L_kw_end')
    store_stamps([(0,0),(1,1),(2,2),(3,3)] + ([(5,4),(6,5),(7,6)] if opt('kst',0) else []))
    e('L_kw_end:')
e('s_endpgm')

e('L_vw:')
e('s_barrier')
e(f's_sub_u32 s{sW}, s{sW}, 5')
e(f's_and_b32 s{sT1}, s{sW}, 1')
e(f's_lshr_b32 s{sT2}, s{sW}, 1')
e(f's_lshl_b32 s3, s{sT1}, 8')
e(f's_add_u32 s{sT0}, s{sT0}, s3')
e(f's_lshl_b32 s3, s{sT2}, 16')
e(f's_add_u32 s{sT0}, s{sT0}, s3')
e('v_lshlrev_b32 v7, 9, v3')
e('v_lshl_add_u32 v7, v2, 4, v7')
e('s_waitcnt lgkmcnt(0)')
srd(S_V, 8, 33554432)
srd(S_WS, 18, 268435456)
e(f's_load_dword s{sTAG}, s[18:19], {EPOCH}')
masks()
e('v_add_u32 v19, 4096, v7')
for r in range(20, 24): e(f'v_mov_b32 v{r}, 0')
e('v_lshrrev_b32 v4, 3, v2')
e('v_lshlrev_b32 v4, 10, v4')
e('v_lshl_add_u32 v4, v3, 8, v4')
e(f's_lshl_b32 s3, s{sT2}, 7')
e(f's_add_u32 s3, s3, {PL}')
e('v_add_u32 v4, s3, v4')
e('v_lshlrev_b32 v6, 4, v0')
e(f's_lshl_b32 s3, s{sT1}, 10')
e('v_add_u32 v6, s3, v6')
e('v_lshrrev_b32 v8, 1, v3')
e('v_lshrrev_b32 v9, 1, v2')
e('v_lshl_add_u32 v9, v8, 4, v9')
e('v_lshlrev_b32 v9, 12, v9')
e('v_and_b32 v10, 1, v2')
e('v_lshl_add_u32 v9, v10, 5, v9')
e('v_and_b32 v10, 1, v3')
e('v_lshl_add_u32 v9, v10, 4, v9')
e(f's_lshl_b32 s3, s{sT1}, 15')
e('v_add_u32 v5, s3, v9')
e(f'v_lshlrev_b32 v9, 4, v8')
e(f'v_add_u32 v9, {LB}, v9')
e(f'v_lshlrev_b32 v10, 2, v8')
e(f'v_add_u32 v10, {MR}, v10')
e(f's_lshl_b32 s{sT3}, s{sH}, 17')
e(f's_lshl_b32 s3, s{sS}, 7')
e(f's_add_u32 s{sT3}, s{sT3}, s3')
e(f's_add_u32 s{sT3}, s{sT3}, {OI}')
e('s_waitcnt lgkmcnt(0)')
mktag()
VB = 32
e(f's_lshl_b32 s91, s{sT2}, 2')
e(f's_add_u32 s91, s91, s{sS}')
if ROT == 1: e(f's_add_u32 s91, s91, s{sH}')
if not ROT: e('s_mov_b32 s91, 0')
def vaddr(i):
    if i % 4 == 0:
        e(f's_add_u32 s90, s91, {i>>2}')
        e(f's_and_b32 s90, s90, 7')
        e(f's_lshl_b32 s90, s90, 13')
        e(f's_add_u32 s94, s{sT0}, s90')
def vissue(i):
    d = VB + i*4
    off = (i & 3) * 2048
    if off < 4096: e(f'buffer_load_dwordx4 v[{d}:{d+3}], v7, s[{S_V}:{S_V+3}], s94 offen offset:{off}{nt}')
    else: e(f'buffer_load_dwordx4 v[{d}:{d+3}], v19, s[{S_V}:{S_V+3}], s94 offen offset:{off-4096}{nt}')
def vload(i):
    vaddr(i)
    if i >= WV: e(f's_waitcnt vmcnt({WV-1})')
    vissue(i)
PPS = [160, 164]
def ppread(q4):
    b = PPS[q4 & 1]
    e(f's_add_u32 s95, s91, {q4}')
    e(f's_and_b32 s95, s95, 7')
    e(f's_lshl_b32 s95, s95, 4')
    e(f'v_add_u32 v12, s95, v4')
    e(f'ds_read_b128 v[{b}:{b+3}], v12')
ASET = [0, 28]
def ands(i):
    pp = PPS[(i//4) & 1] + (i & 3)
    a = ASET[i & 1]
    for j in range(4): e(f'v_and_b32 v{a+j}, v{pp}, v{14+j}')
def pv(i, outstanding):
    if i % 4 == 0 and i//4 < 7: ppread(i//4 + 1)
    e(f's_waitcnt vmcnt({outstanding})')
    a = ASET[i & 1]
    d = VB + i*4
    if i % 4 == 3 and i < 31: e('s_waitcnt lgkmcnt(0)')
    else: e('s_nop 0')
    e(f'v_mfma_f32_16x16x32_bf16 v[20:23], v[{a}:{a+3}], v[{d}:{d+3}], v[20:23]')
    if i < 31: ands(i+1)
e(f's_cmp_eq_u32 s{sT2}, 1')
e('s_cbranch_scc1 L_v2')
lds_spin('L_v1k', 16, opt('kthr', 1), sl=LSL, ge=True)
for i in range(32): vload(i)
lds_inc(20)
lds_spin('L_v1p', 8, 4, sl=LSL)
ppread(0)
e('s_waitcnt lgkmcnt(0)')
ands(0)
for i in range(32): pv(i, 31 - i)
e('s_nop 7')
e('ds_write_b128 v6, v[20:23]')
e('s_waitcnt lgkmcnt(0)')
lds_inc(24)
srd(S_WO, 12, 3670016)
e(f's_lshl_b32 s{sT0}, s{sBP}, 4')
e(f's_mul_i32 s{sT0}, s{sT0}, 896')
e(f's_mul_i32 s3, s{sT1}, {7*1024}')
e(f's_add_u32 s{sT0}, s{sT0}, s3')
e(f's_add_u32 s3, s3, {WOL}')
e('v_mov_b32 v7, v6')
e(f's_lshl_b32 s{sT2}, s{sT1}, 10')
e(f'v_subrev_u32 v7, s{sT2}, v7')
lds_spin('L_v1w', 12, opt('wothr', 2), sl=LSL, ge=True)
e('s_mov_b32 m0, s3')
e('s_nop 0')
for jj in range(4):
    e(f'buffer_load_dwordx4 v7, s[{S_WO}:{S_WO+3}], s{sT0} offen offset:{jj*1024}{nt} lds')
e(f's_add_u32 s3, s3, 4096')
e(f's_add_u32 s{sT0}, s{sT0}, 4096')
e('s_mov_b32 m0, s3')
e('s_nop 0')
for jj in range(3):
    e(f'buffer_load_dwordx4 v7, s[{S_WO}:{S_WO+3}], s{sT0} offen offset:{jj*1024}{nt} lds')
e('s_waitcnt vmcnt(0)')
lds_inc(28)
e('s_endpgm')
e('L_v2:')
lds_spin('L_v2k', 20, opt('vthr', 1), sl=LSL, ge=True)
stamp(1)
for i in range(NI): vload(i)
lds_spin('L_v2p', 8, 4, sl=LSL)
stamp(3)
e('ds_read_b128 v[160:163], v9')
e('ds_read_b32 v24, v10')
e('s_waitcnt lgkmcnt(0)')
e('v_add_f32 v160, v160, v161')
e('v_add_f32 v162, v162, v163')
e('v_add_f32 v25, v160, v162')
e('v_mov_b32 v26, v24')
e('v_mov_b32 v27, v24')
for r in range(24, 28): e(f'v_bfi_b32 v{r}, v18, v{r}, s{sTAG}')
e(f'buffer_store_dwordx4 v[24:27], v5, {W}, s{sT3} offen offset:64')
e(f's_add_u32 s3, s{sT3}, s{sC2}')
MLLATE = opt('mllate', 1)
if not MLLATE: e(f'buffer_store_dwordx4 v[24:27], v5, {W}, s3 offen offset:64 sc1')
NX = 1 if MLLATE else 2
ppread(0)
e('s_waitcnt lgkmcnt(0)')
ands(0)
done = 0
rem = 32 - NI
per = -(-NI // max(rem, 1))
def vload2(i):
    vaddr(i)
    k = WV - 1
    if i - WV < NI: k_ = WV - 1 + (NX if (i - WV + 1) <= NI - 1 + 1 and True else 0)
    extra = NX if (i - WV) <= NI - 1 else 0
    e(f's_waitcnt vmcnt({WV-1+extra})')
    vissue(i)
for i in range(NI, 32):
    vload2(i)
    for k in range(per):
        if done < NI:
            pv(done, (i - done) + NX)
            done += 1
lds_inc(12)
stamp(2)
lds_spin('L_v2r', 24, 2, sl=0)
e('ds_read_b128 v[8:11], v6')
while done < 32:
    extra = NX if done <= NI - 1 else 0
    pv(done, 31 - done + extra)
    done += 1
stamp(4)
e('s_waitcnt lgkmcnt(0)')
e('s_nop 6')
for r in range(4): e(f'v_add_f32 v{20+r}, v{20+r}, v{8+r}')
for r in range(4): e(f'v_bfi_b32 v{20+r}, v18, v{20+r}, s{sTAG}')
e(f'buffer_store_dwordx4 v[20:23], v5, {W}, s{sT3} offen')
CDLY = opt('cdly', 1)
if CDLY:
    if TIMED: stamp(5)
    lds_spin('L_v2c', 32, 1, sl=4, ge=True, bound=opt('cbound', 40))
e(f'buffer_store_dwordx4 v[20:23], v5, {W}, s3 offen sc1')
if MLLATE: e(f'buffer_store_dwordx4 v[24:27], v5, {W}, s3 offen offset:64 sc1')
if TIMED:
    if not CDLY: stamp(5)
    e(f's_cmp_eq_u32 s{sW}, {VREC}')
    e('s_cbranch_scc0 L_end')
    store_stamps([(4,7)] if opt('kst',0) else [(3,4),(2,5),(4,7),(5,6)])
e('s_endpgm')

e('L_comm:')
e('s_setprio 3')
e(f'v_mov_b32 v12, {FL}')
for r in range(20, 24): e(f'v_mov_b32 v{r}, 0')
e('ds_write_b128 v12, v[20:23]')
e('ds_write_b128 v12, v[20:23] offset:16')
e('ds_write_b128 v12, v[20:23] offset:32')
e('s_waitcnt lgkmcnt(0)')
e('s_barrier')
e('v_lshlrev_b32 v6, 15, v3')
e('v_lshl_add_u32 v6, v2, 4, v6')
e('v_lshlrev_b32 v7, 3, v3')
e(f's_lshl_b32 s{sT0}, s{sS}, 17')
e(f's_lshl_b32 s{sT1}, s{sH}, 10')
e(f's_add_u32 s{sT0}, s{sT0}, s{sT1}')
e(f's_lshl_b32 s{sT2}, s{sS}, 5')
e('v_lshlrev_b32 v4, 4, v0')
e('s_waitcnt lgkmcnt(0)')
srd(S_X, 4, 896)
srd(S_WQ, 10, 3670016)
e(f'buffer_load_dwordx2 v[28:29], v7, s[{S_X}:{S_X+3}], s{sT2} offen')
e(f's_load_dword s{sTAG}, s[18:19], {EPOCH}')
for k in range(4):
    if k: e(f's_add_u32 s{sT0}, s{sT0}, 8192')
    for t in range(4):
        d = 64 + (k*4+t)*4
        e(f'buffer_load_dwordx4 v[{d}:{d+3}], v6, s[{S_WQ}:{S_WQ+3}], s{sT0} offen offset:{t*256}{nt if opt("wqnt",1) else ""}' if not opt('nowq',0) else 's_nop 0')
srd(S_WS, 18, 268435456)
e(f's_lshl_b32 s{sT0}, s{sH}, 16')
e(f's_lshl_b32 s{sT1}, s{sS}, 6')
e(f's_add_u32 s96, s{sT1}, s{sT0}')
e(f's_lshl_b32 s{sT2}, s{sS}, 11')
e(f's_add_u32 s{sT0}, s{sT0}, s{sT2}')
e(f's_add_u32 s92, s{sT0}, {QA}')
e(f's_add_u32 s93, s{sT0}, {QI}')
PTP = opts.get('ptpol','sc1').replace('plain','')
for (rr, ss, oo) in ((128,92,0),(132,92,1024),(136,93,0),(140,93,1024)):
    e(f'buffer_load_dwordx4 v[{rr}:{rr+3}], v4, {W}, s{ss} offen offset:{oo} {PTP}' if not opt('nopt',0) else 's_nop 0')
srd(S_OUT, 14, 896)
masks()
for r in range(48, 64): e(f'v_mov_b32 v{r}, 0')
e('v_lshrrev_b32 v1, 1, v2')
e('v_lshlrev_b32 v1, 11, v1')
e('v_and_b32 v10, 1, v2')
e('v_lshl_add_u32 v1, v10, 5, v1')
e('v_lshl_add_u32 v1, v3, 4, v1')
e('v_lshrrev_b32 v9, 2, v0')
e('v_lshlrev_b32 v9, 11, v9')
e('v_and_b32 v10, 3, v0')
e('v_lshl_add_u32 v9, v10, 4, v9')
e('v_mov_b32 v10, 0xffff0000')
e('v_lshlrev_b32 v5, 3, v0')
e(f'v_add_u32 v5, {QL}, v5')
e('s_mov_b32 s4, 0x01000100')
e('s_mov_b32 s5, 0x03020302')
e('s_waitcnt vmcnt(20) lgkmcnt(0)')
mktag()
if opt('noq',0):
    e(f's_and_b32 s3, s{sTAG}, 0xff')
    e('v_mov_b32 v19, s3')
    e('s_waitcnt vmcnt(0)')
    e('s_branch L_skipq')
e(f's_and_b32 s3, s{sTAG}, 0xff')
e('v_mov_b32 v19, s3')
e('v_mov_b32 v7, v9')
e('v_perm_b32 v20, v28, v28, s4')
e('v_perm_b32 v21, v28, v28, s5')
e('v_perm_b32 v22, v29, v29, s4')
e('v_perm_b32 v23, v29, v29, s5')
for k in range(4):
    for j in range(4):
        e(f'v_and_b32 v{32+4*k+j}, v{20+k}, v{14+j}')
cnt = 20
for k in range(4):
    cnt -= 4
    e(f's_waitcnt vmcnt({cnt})')
    for t in range(4):
        d = 64 + (k*4+t)*4
        e(f'v_mfma_f32_16x16x32_bf16 v[{48+4*t}:{51+4*t}], v[{32+4*k}:{35+4*k}], v[{d}:{d+3}], v[{48+4*t}:{51+4*t}]')
e(f's_add_u32 s{sT4}, s96, {QA}')
e('s_mov_b32 exec_hi, 0')
e('s_waitcnt vmcnt(0)')
e('s_nop 3')
for t in range(4):
    b = 48 + 4*t
    for r in range(4):
        e(f'v_bfi_b32 v{b+r}, v18, v{b+r}, s{sTAG}')
    e(f'buffer_store_dwordx4 v[{b}:{b+3}], v1, {W}, s{sT4} offen')
    if t < 3: e(f's_add_u32 s{sT4}, s{sT4}, 16384')
e('s_mov_b64 exec, -1')
stamp(8)

def flush(level):
    e('s_mov_b32 exec_hi, 0')
    e(f's_add_u32 s{sT4}, s96, s{sC2}')
    e(f's_add_u32 s91, s{sT4}, {QA}')
    for t in range(4):
        b = 48 + 4*t
        e(f'buffer_store_dwordx4 v[{b}:{b+3}], v1, {W}, s91 offen sc1')
        if t < 3: e(f's_add_u32 s91, s91, 16384')
    e('s_mov_b64 exec, -1')
    if level >= 2:
        e(f's_add_u32 s91, s{sT4}, {QI}')
        e(f'buffer_store_dwordx4 v[44:47], v7, {W}, s91 offen sc1')
        e(f's_add_u32 s91, s{sT4}, {QI+32768}')
        e(f'buffer_store_dwordx4 v[44:47], v7, {W}, s91 offen sc1')
FP = opts.get('fp','sc1').replace('+',' ')
def poll(label, mkloads, base, nwords, sbase, level, pre=0, rs=0, c2=True, hook=None):
    def check():
        e(f'v_msad_u8 v12, v{base}, v19, 0')
        e(f'v_msad_u8 v13, v{base+1}, v19, 0')
        for t in range(2, nwords, 2):
            e(f'v_msad_u8 v12, v{base+t}, v19, v12')
            e(f'v_msad_u8 v13, v{base+t+1}, v19, v13')
        e('v_or_b32 v12, v12, v13')
        e('v_cmp_ne_u32 vcc, 0, v12')
    e(f's_mov_b32 s{sSPIN}, 0')
    if pre: e(f's_sleep {pre}')
    e(f's_branch {label}_ld')
    e(f'{label}:')
    if rs: e(f's_sleep {rs}')
    e(f's_add_u32 s{sSPIN}, s{sSPIN}, 1')
    e(f's_cmp_ge_u32 s{sSPIN}, {SOFT}')
    e(f's_cbranch_scc1 {label}_slow')
    e(f'{label}_ld:')
    for l in mkloads(base, sbase, FP if c2 else 'sc1'): e(l)
    if hook: hook('f')
    e('s_waitcnt vmcnt(0)')
    check()
    e(f's_cbranch_vccnz {label}')
    e(f's_branch {label}_done')
    e(f'{label}_slow:')
    e(f's_and_b32 s91, s{sSPIN}, 15')
    e(f's_cmp_eq_u32 s91, {SOFT & 15}')
    e(f's_cbranch_scc0 {label}_nf')
    flush(level)
    e(f'{label}_nf:')
    e(f's_mov_b32 s90, s{sbase}')
    if c2:
        e(f's_bitcmp1_b32 s{sSPIN}, 0')
        e(f's_cbranch_scc0 {label}_c1')
        e(f's_add_u32 s90, s{sbase}, s{sC2}')
        e(f'{label}_c1:')
    for l in mkloads(base, 90, 'sc1'): e(l)
    if hook: hook('s')
    e('s_waitcnt vmcnt(0)')
    check()
    e(f's_cbranch_vccz {label}_done')
    e('s_sleep 2')
    e(f's_add_u32 s{sSPIN}, s{sSPIN}, 1')
    e(f's_cmp_lt_u32 s{sSPIN}, {MAXSPIN}')
    e(f's_cbranch_scc1 {label}_slow')
    e(f'{label}_done:')

poll('L_pa', lambda b, sr, FP: [f'buffer_load_dwordx4 v[{b}:{b+3}], v4, {W}, s{sr} offen {FP}',
                            f'buffer_load_dwordx4 v[{b+4}:{b+7}], v4, {W}, s{sr} offen offset:1024 {FP}']
                            + ([f'buffer_load_dwordx4 v[136:139], v4, {W}, s93 offen {FP}',
                               f'buffer_load_dwordx4 v[140:143], v4, {W}, s93 offen offset:1024 {FP}'] if opt('keepb', 1) else []),
     64, 8, 92, 1, rs=RSA)
for c in range(4): e(f'v_add_f32 v{20+c}, v{64+c}, v{68+c}')
for sh in (4, 8):
    for r in range(20, 24):
        e(f'v_add_f32_dpp v{r}, v{r}, v{r} row_ror:{sh} row_mask:0xf bank_mask:0xf')
for sw in ('v_permlane16_swap_b32', 'v_permlane32_swap_b32'):
    for c in range(4): e(f'v_mov_b32 v{24+c}, v{20+c}')
    e('s_nop 1')
    for c in range(4): e(f'{sw} v{24+c}, v{20+c}')
    e('s_nop 1')
    for c in range(4): e(f'v_add_f32 v{20+c}, v{20+c}, v{24+c}')
for r in range(4):
    e(f'v_cvt_pk_bf16_f32 v{24+r}, v{20+r}, v{20+r}')
for r in range(4):
    e(f'v_and_or_b32 v{44+r}, v{24+r}, v10, s3')
e(f's_add_u32 s{sT4}, s96, {QI}')
e(f'buffer_store_dwordx4 v[44:47], v7, {W}, s{sT4} offen')
e(f's_add_u32 s{sT4}, s96, {QI+32768}')
e(f'buffer_store_dwordx4 v[44:47], v7, {W}, s{sT4} offen')
stamp(9)
poll('L_pq', lambda b, sr, FP: [f'buffer_load_dwordx4 v[{b}:{b+3}], v4, {W}, s{sr} offen {FP}',
                            f'buffer_load_dwordx4 v[{b+4}:{b+7}], v4, {W}, s{sr} offen offset:1024 {FP}'],
     96, 8, 93, 2, rs=RSQ)
e('s_mov_b32 s3, 0x07060302')
e(f'v_perm_b32 v20, v97, v96, s3')
e(f'v_perm_b32 v21, v99, v98, s3')
e(f'v_perm_b32 v22, v101, v100, s3')
e(f'v_perm_b32 v23, v103, v102, s3')
e(f'ds_write_b64 v5, v[20:21]')
e(f'ds_write_b64 v5, v[22:23] offset:512')
e('L_skipq:')
e(f'v_mov_b32 v12, {FL}')
e('v_mov_b32 v13, 1')
e('s_waitcnt lgkmcnt(0)')
e('ds_write_b32 v12, v13')
if opt('latepoll',0): e('s_sleep 127')
stamp(10)
PT = opts.get('ptp', '')
if PT:
    e('s_cmp_ge_u32 s2, 112')
    e('s_cbranch_scc1 L_nopt')
    e(f's_lshl_b32 s92, s2, 12')
    e(f's_add_u32 s92, s92, {PI}')
    for k in range(4):
        e(f'buffer_load_dwordx4 v[{104+4*k}:{107+4*k}], v4, {W}, s92 offen offset:{k*1024} {PT.replace("+"," ").replace("plain","")}')
    e('L_nopt:')
WO = 104
e('v_mul_u32_u24 v6, 3584, v3')
e('v_lshl_add_u32 v6, v2, 4, v6')
e(f'v_add_u32 v6, {WOL}, v6')
e('v_lshlrev_b32 v5, 7, v2')
e('v_lshl_add_u32 v4, v3, 4, v5')
e('v_add_u32 v5, 64, v5')
e(f's_lshl_b32 s92, s{sBP}, 12')
e(f's_add_u32 s92, s92, {OI}')
ACC = 88
for r in range(ACC, ACC+16): e(f'v_mov_b32 v{r}, 0')
PLA = opt('pla', 0)
e('v_lshl_add_u32 v8, v2, 1, v3')
e(f'v_lshlrev_b32 v8, {4 if PLA else 12}, v8')
e(f's_lshl_b32 s95, s{sBP}, {11 if PLA else 4}')
e(f's_add_u32 s95, s95, {PI}')
e(f's_mov_b32 s{sWOF}, 0')
e(f'v_mov_b32 v9, {FL+28}')
def wo_loads():
    for k in range(4):
        for t in range(4):
            d = WO + (k*4+t)*4
            e(f'ds_read_b128 v[{d}:{d+3}], v6 offset:{k*896+t*256}')
def wo_hook(sfx):
    e(f's_cmp_eq_u32 s{sWOF}, 1')
    e(f's_cbranch_scc1 L_wo_skip{sfx}')
    e('ds_read_b32 v10, v9')
    e('s_waitcnt lgkmcnt(0)')
    e(f'v_readfirstlane_b32 s91, v10')
    e(f's_cmp_ge_u32 s91, 2')
    e(f's_cbranch_scc0 L_wo_skip{sfx}')
    wo_loads()
    e(f's_mov_b32 s{sWOF}, 1')
    e(f'L_wo_skip{sfx}:')
PB = 28
poll('L_pm', lambda b, sr, FP: [f'buffer_load_dwordx4 v[{b}:{b+3}], v5, {W}, s{sr} offen {FP}',
              f'buffer_load_dwordx4 v[{b+4}:{b+7}], v5, {W}, s{sr} offen offset:2048 {FP}',
              ] + ([f'buffer_load_dwordx4 v[36:39], v4, {W}, s{sr} offen {FP}',
                    f'buffer_load_dwordx4 v[40:43], v4, {W}, s{sr} offen offset:2048 {FP}'] if opt('keepv', 1) else []),
     PB, 8, 92, 2, rs=opt('rsm', 1), hook=wo_hook)
e(f'v_max_f32 v20, v{PB}, v{PB+4}')
e('s_nop 1')
for sh in (8,4,2,1):
    e(f'v_max_f32_dpp v20, v20, v20 row_ror:{sh} row_mask:0xf bank_mask:0xf')
    e('s_nop 1')
e(f'v_sub_f32 v21, v{PB}, v20')
e(f'v_sub_f32 v22, v{PB+4}, v20')
e('v_exp_f32 v21, v21')
e('v_exp_f32 v22, v22')
e('s_nop 0')
e(f'v_mul_f32 v23, v21, v{PB+1}')
e(f'v_fma_f32 v23, v22, v{PB+5}, v23')
e('s_nop 1')
for sh in (8,4,2,1):
    e(f'v_add_f32_dpp v23, v23, v23 row_ror:{sh} row_mask:0xf bank_mask:0xf')
    e('s_nop 1')
e('v_rcp_f32 v23, v23')
e('s_nop 0')
e('v_mul_f32 v10, v21, v23')
e('v_mul_f32 v11, v22, v23')
e(f's_cmp_eq_u32 s{sWOF}, 1')
e('s_cbranch_scc1 L_wo_ok')
lds_spin('L_wow', 28, 2, sl=1)
wo_loads()
e('L_wo_ok:')
def vl(b, sr, FP):
    return [f'buffer_load_dwordx4 v[{b}:{b+3}], v4, {W}, s{sr} offen {FP}',
            f'buffer_load_dwordx4 v[{b+4}:{b+7}], v4, {W}, s{sr} offen offset:2048 {FP}']
VB2 = 36
poll('L_po', vl, VB2, 8, 92, 2, rs=RSO)
for k in range(4): e(f'v_mul_f32 v{24+k}, v10, v{VB2+k}')
for k in range(4): e(f'v_fma_f32 v{24+k}, v11, v{VB2+4+k}, v{24+k}')
stamp(12)
for sh in (8,4,2,1):
    for r in (24,25,26,27):
        e(f'v_add_f32_dpp v{r}, v{r}, v{r} row_ror:{sh} row_mask:0xf bank_mask:0xf')
for k in range(4):
    e(f'v_cvt_pk_bf16_f32 v{24+k}, v{24+k}, v{24+k}')
AOP = [64, 68, 72, 76]
for k in range(4):
    for j in range(4):
        e(f'v_and_b32 v{AOP[k]+j}, v{24+k}, v{14+j}')
e('s_waitcnt lgkmcnt(0)')
e('s_nop 0')
for t in range(4):
    for k in range(4):
        d = WO + (k*4+t)*4
        e(f'v_mfma_f32_16x16x32_bf16 v[{ACC+4*t}:{ACC+3+4*t}], v[{AOP[k]}:{AOP[k]+3}], v[{d}:{d+3}], v[{ACC+4*t}:{ACC+3+4*t}]')
e('s_mov_b32 exec_hi, 0')
for t in range(4):
    bb = ACC + 4*t
    if t == 3: e('s_nop 2')
    for r in range(4):
        e(f'v_bfi_b32 v{bb+r}, v18, v{bb+r}, s{sTAG}')
    if t: e(f's_add_u32 s95, s95, {512 if PLA else 32*4096}')
    e(f'buffer_store_dwordx4 v[{bb}:{bb+3}], v8, {W}, s95 offen sc1')
e('s_mov_b64 exec, -1')
if CDLY:
    e(f'v_mov_b32 v12, {FL+32}')
    e('v_mov_b32 v13, 1')
    e('ds_write_b32 v12, v13')
stamp(13)
NF = 112
e(f's_cmp_ge_u32 s2, {NF}')
e('s_cbranch_scc1 L_comm_done')
PB2 = 104
if PLA:
    e('v_lshlrev_b32 v4, 11, v0')
    e('v_add_u32 v5, 0x20000, v4')
    e('v_add_u32 v6, 0x40000, v4')
    e('v_add_u32 v28, 0x60000, v4')
    e(f's_lshl_b32 s92, s2, 4')
else:
    e('v_lshlrev_b32 v4, 4, v0')
    e(f's_lshl_b32 s92, s2, 12')
e(f's_add_u32 s92, s92, {PI}')
def pl(b, sr, FP):
    if PLA: return [f'buffer_load_dwordx4 v[{b+4*k}:{b+3+4*k}], v{(4,5,6,28)[k]}, {W}, s{sr} offen sc1' for k in range(4)]
    return [f'buffer_load_dwordx4 v[{b+4*k}:{b+3+4*k}], v4, {W}, s{sr} offen offset:{k*1024} sc1' for k in range(4)]
poll('L_pp', pl, PB2, 16, 92, 2, pre=PREP, rs=RSP, c2=False)
stamp(14)
for c in range(4):
    e(f'v_add_f32 v{8+c}, v{PB2+c}, v{PB2+4+c}')
    e(f'v_add_f32 v{20+c}, v{PB2+8+c}, v{PB2+12+c}')
for c in range(4):
    e(f'v_add_f32 v{8+c}, v{8+c}, v{20+c}')
for sh in (8,4,2,1):
    for r in (8,9,10,11):
        e(f'v_add_f32_dpp v{r}, v{r}, v{r} row_ror:{sh} row_mask:0xf bank_mask:0xf')
for sw in ('v_permlane16_swap_b32', 'v_permlane32_swap_b32'):
    for c in range(4): e(f'v_mov_b32 v{20+c}, v{8+c}')
    e('s_nop 1')
    for c in range(4): e(f'{sw} v{20+c}, v{8+c}')
    e('s_nop 1')
    for c in range(4): e(f'v_add_f32 v{8+c}, v{8+c}, v{20+c}')
e('v_cvt_pk_bf16_f32 v8, v8, v9')
e('v_cvt_pk_bf16_f32 v9, v10, v11')
e(f's_lshl_b32 s{sT0}, s2, 3')
e('v_mov_b32 v4, 0')
e('s_mov_b64 exec, 1')
e(f'buffer_store_dwordx2 v[8:9], v4, s[{S_OUT}:{S_OUT+3}], s{sT0} offen')
e('s_cmp_eq_u32 s2, 0')
e('s_cbranch_scc0 L_noepoch')
e(f'v_mov_b32 v10, s{sTAG}')
e(f'buffer_store_dword v10, v4, {W}, 0 offen offset:{EPOCH} sc1')
e('L_noepoch:')
e('s_mov_b64 exec, -1')
e('L_comm_done:')
if opt('enddly',0): e(f's_sleep {opt("enddly",0)}')
if TIMED:
    store_stamps([(8,8),(9,9),(10,10),(12,12),(13,13),(14,14)])
e('L_end:')
e('s_endpgm')
e('L_codeend:')
L.append('.section .rodata,"a"')
L.append('.p2align 6')
L.append(f'.amdhsa_kernel {NAME}')
L.append('  .amdhsa_next_free_vgpr 168')
L.append('  .amdhsa_next_free_sgpr 102')
L.append('  .amdhsa_accum_offset 168')
L.append('  .amdhsa_group_segment_fixed_size 0')
L.append('  .amdhsa_kernarg_size 64')
L.append('  .amdhsa_user_sgpr_count 2')
L.append('  .amdhsa_user_sgpr_kernarg_segment_ptr 1')
L.append('  .amdhsa_system_sgpr_workgroup_id_x 1')
L.append('.end_amdhsa_kernel')
open(sys.argv[1], 'w').write('\n'.join(L) + '\n')
```

```python
import sys
opts = dict(a.split('=') for a in sys.argv[2:])
WAVES = int(opts.get('waves', '8'))
WIN = int(opts.get('win', '63'))
MODE = opts.get('mode', 'lds')
PROBE = int(opts.get('probe', '1'))
L = []
def OFFJ(j): return 0 if (opts.get('pint','0')=='1' or opts.get('wint','0')=='1') else (j&3)*1024
def e(s=''): L.append('    ' + s if s and not s.endswith(':') else s)
nt = ' ' + opts.get('pol','nt').replace('+',' ')
NAME = 'standalone__gqa_block_cached__decode_kernel'
per_wave = 131072 // WAVES
nld = per_wave // 1024
LDS = 131072
L.append(f'; @launch grid=(256,1,1) block=({(WAVES+1)*64},1,1) lds={LDS}')
L.append('.amdgcn_target "amdgcn-amd-amdhsa--gfx950"')
L.append('.text')
L.append(f'.globl {NAME}')
L.append('.p2align 8')
L.append(f'.type {NAME},@function')
L.append(f'{NAME}:')
def stamp(i): e(f's_memrealtime s[{60+2*i}:{61+2*i}]')
def srd(d, base, nbytes):
    e(f's_mov_b32 s{d}, s{base}')
    e(f's_and_b32 s{d+1}, s{base+1}, 0xffff')
    e(f's_mov_b32 s{d+2}, {nbytes}')
    e(f's_mov_b32 s{d+3}, 0x20000')
def dump(lo, hi):
    e('s_waitcnt lgkmcnt(0)')
    e('s_mov_b64 exec, 1')
    e('s_lshl_b32 s52, s2, 7')
    e(f's_add_u32 s52, s52, {128<<20}')
    e('v_mov_b32 v2, 0')
    for i in range(lo, hi):
        e(f'v_mov_b32 v4, s{60+2*i}')
        e(f'v_mov_b32 v5, s{61+2*i}')
        e(f'buffer_store_dwordx2 v[4:5], v2, s[36:39], s52 offen offset:{i*8}')
        e('s_nop 1')
e(f's_cmp_ge_u32 s2, 256')
e('s_cbranch_scc1 L_end')
stamp(0)
e('s_load_dwordx16 s[4:19], s[0:1], 0')
e('v_lshrrev_b32 v1, 6, v0')
e('v_and_b32 v0, 63, v0')
e('v_readfirstlane_b32 s50, v1')
e('v_and_b32 v2, 15, v0')
e('v_lshrrev_b32 v3, 4, v0')
e('s_waitcnt lgkmcnt(0)')
srd(20, 6, 33554432); srd(24, 8, 33554432); srd(36, 18, 268435456)
e('s_cmp_eq_u32 s50, 0')
e('s_cbranch_scc1 L_probe')
e('s_sub_u32 s50, s50, 1')
e('s_and_b32 s48, s2, 7')
e('s_lshr_b32 s49, s2, 3')
e('s_lshl_b32 s52, s48, 22')
e(f's_lshl_b32 s53, s49, 17')
e('s_add_u32 s52, s52, s53')
e(f's_mul_i32 s53, s50, {per_wave}')
e('s_add_u32 s52, s52, s53')
e('v_lshlrev_b32 v4, 4, v0')
R = opts.get('rot','0')
if R == '1':
    e('s_lshl_b32 s56, s50, 1')
    e('s_add_u32 s56, s56, s49')
elif R == '2':
    e('s_add_u32 s56, s2, s50')
elif R == '3':
    e('s_lshl_b32 s56, s50, 1')
    e('s_add_u32 s56, s56, s49')
    e('s_add_u32 s56, s56, s48')
e(f's_lshl_b32 s58, s50, 10')
e(f's_sub_u32 s57, s52, s53')
e(f's_add_u32 s57, s57, s58')
if opts.get('wint','0') == '1':
    W2 = opts.get('wrot','0')
    if W2 == '0': e('s_mov_b32 s56, 0')
    elif W2 == '1':
        e('s_add_u32 s56, s49, s48')
    elif W2 == '2':
        e('s_add_u32 s56, s49, s48')
        e('s_lshl_b32 s56, s56, 2')
cnt = 0
for phase, srdn in ((0, 20), (1, 24)):
    for j in range(nld):
        ROT = opts.get('rot','0')
        npg = nld // 4
        PI_ = opts.get('pint','0') == '1'
        if opts.get('wint','0') == '1':
            e(f's_add_u32 s55, s56, {j}')
            e(f's_and_b32 s55, s55, {nld-1}')
            e(f's_mul_i32 s55, s55, {WAVES*1024}')
            e(f's_add_u32 s54, s57, s55')
            e(f's_add_u32 m0, s58, s55')
            e('s_nop 0')
        elif PI_:
            e(f's_add_u32 s55, s56, {j % npg}')
            e(f's_and_b32 s55, s55, {npg-1}')
            e(f's_lshl_b32 s55, s55, 12')
            e(f's_add_u32 s55, s55, {(j // npg)*1024}')
            e(f's_add_u32 s54, s52, s55')
            e(f's_add_u32 m0, s53, s55')
            e('s_nop 0')
        elif j % 4 == 0:
            if ROT == '0':
                e(f's_add_u32 s54, s52, {(j>>2)*4096}')
                e(f's_add_u32 m0, s53, {(j>>2)*4096}')
            else:
                e(f's_add_u32 s55, s56, {j>>2}')
                e(f's_and_b32 s55, s55, {npg-1}')
                e(f's_lshl_b32 s55, s55, 12')
                e(f's_add_u32 s54, s52, s55')
                e(f's_add_u32 m0, s53, s55')
            e('s_nop 0')
        if cnt >= WIN: e(f's_waitcnt vmcnt({WIN-1})')
        if cnt == 1 and opts.get('first','0')=='1':
            e('s_waitcnt vmcnt(0)')
            stamp(5)
        if MODE == 'lds' or phase == 0:
            e(f'buffer_load_dwordx4 v4, s[{srdn}:{srdn+3}], s54 offen offset:{OFFJ(j)}{nt} lds')
        else:
            d = 16 + j*4
            e(f'buffer_load_dwordx4 v[{d}:{d+3}], v4, s[{srdn}:{srdn+3}], s54 offen offset:{(j&3)*1024}{nt}')
        cnt += 1
    stamp(1+phase)
e('s_waitcnt vmcnt(0)')
stamp(3)
e('s_barrier')
stamp(4)
e(f's_cmp_eq_u32 s50, {WAVES-1}')
e('s_cbranch_scc0 L_end')
if opts.get('first','0')=='1': dump(0, 6)
else: dump(0, 5)
e('s_endpgm')
e('L_probe:')
e('s_setprio 3')
e('v_lshlrev_b32 v4, 4, v0')
e('s_lshl_b32 s52, s2, 10')
e('s_add_u32 s52, s52, 65536')
if PROBE:
    for p in range(5):
        e('s_sleep 20')
        stamp(6+2*p)
        e(f'buffer_load_dwordx4 v[8:11], v4, s[36:39], s52 offen sc1')
        e('s_waitcnt vmcnt(0)')
        stamp(7+2*p)
e('s_barrier')
dump(6, 16)
e('L_end:')
e('s_endpgm')
nv = max(64, 16 + nld*4); nv = (nv+7)//8*8
L.append('.section .rodata,"a"')
L.append('.p2align 6')
L.append(f'.amdhsa_kernel {NAME}')
L.append(f'  .amdhsa_next_free_vgpr {nv}')
L.append('  .amdhsa_next_free_sgpr 96')
L.append(f'  .amdhsa_accum_offset {min(nv,256)}')
L.append('  .amdhsa_group_segment_fixed_size 0')
L.append('  .amdhsa_kernarg_size 64')
L.append('  .amdhsa_user_sgpr_count 2')
L.append('  .amdhsa_user_sgpr_kernarg_segment_ptr 1')
L.append('  .amdhsa_system_sgpr_workgroup_id_x 1')
L.append('.end_amdhsa_kernel')
open(sys.argv[1], 'w').write('\n'.join(L) + '\n')
```

```python
import sys
opts = dict(a.split('=') for a in sys.argv[2:])
def opt(k, d): return int(opts.get(k, str(d)))
STAMP = opt('stamp', 0); DBGST = opt('dbgst', 0); TIMED = STAMP or DBGST
MAXSPIN = opt('maxspin', 20000)
WK = opt('wk', 6); WK0 = opt('wk0', 6); NK0 = opt('nk0', 0); WV = opt('wv', 12); NI = opt('ni', 24)
RSA = opt('rsa', 2); RSQ = opt('rsq', 2); RSO = opt('rso', 1)
PREP = opt('prep', 14); RSP = opt('rsp', 2)
SOFT = opt('soft', 48)
KREC = opt('krec', 3); VREC = opt('vrec', 3)
LSL = opt('lsl', 1)

L = []
def e(s=''): L.append('    ' + s if s and not s.endswith(':') else s)
nt = ' ' + opts.get('pol','nt').replace('+',' ')
EPOCH = 0
QA = 512 << 10
QI = 1 << 20
OI = 2 << 20
PI = 4 << 20
C2 = 8 << 20
STAMPS = 128 << 20
PL = 131072
QL = PL + 2048
MB = QL + 1024
LB = MB + 32
MR = LB + 32
FL = MR + 16
WOL = 4096
RED = 0
LDS_TOTAL = FL + 48
assert FL % 16 == 0

S_K, S_V, S_WQ, S_WO, S_WS, S_X, S_OUT = 20, 24, 28, 32, 36, 40, 44
sH, sS, sW, sTAG = 48, 49, 50, 51
sT0, sT1, sT2, sT3 = 52, 53, 54, 55
sC, sSPIN, sBP, sT4 = 56, 57, 58, 59
sC2, sCOMM, sWOF = 97, 100, 101
W = f's[{S_WS}:{S_WS+3}]'
def stamp(i):
    if TIMED: e(f's_memrealtime s[{60+2*i}:{61+2*i}]')
def lgk(n): return f's_waitcnt lgkmcnt({0 if TIMED else n})'
def srd(d, base, nbytes):
    e(f's_mov_b32 s{d}, s{base}')
    e(f's_and_b32 s{d+1}, s{base+1}, 0xffff')
    e(f's_mov_b32 s{d+2}, {nbytes}')
    e(f's_mov_b32 s{d+3}, 0x20000')
DB = 0
def store_stamps(pairs):
    global DB
    if STAMP:
        e('s_waitcnt lgkmcnt(0)')
        e('s_mov_b64 exec, 1')
        e(f's_lshl_b32 s{sT0}, s2, 7')
        e(f's_add_u32 s{sT0}, s{sT0}, {STAMPS}')
        e(f'v_mov_b32 v2, 0')
        for i, slot in pairs:
            e(f'v_mov_b32 v4, s{60+2*i}')
            e(f'v_mov_b32 v5, s{61+2*i}')
            e(f'buffer_store_dwordx2 v[4:5], v2, {W}, s{sT0} offen offset:{slot*8}')
            e('s_nop 1')
        e('s_mov_b64 exec, -1')
    if DBGST:
        DB += 1
        e('s_cmp_eq_u32 s2, 0')
        e(f's_cbranch_scc0 L_dbg{DB}')
        e('s_waitcnt lgkmcnt(0)')
        e('s_mov_b64 exec, 1')
        e('s_mov_b32 s4, s16')
        e('s_and_b32 s5, s17, 0xffff')
        e('s_mov_b32 s6, 256')
        e('s_mov_b32 s7, 0x20000')
        e(f'v_mov_b32 v2, 0')
        for i, slot in pairs:
            e(f'v_mov_b32 v4, s{60+2*i}')
            e(f'buffer_store_dword v4, v2, s[4:7], 0 offen offset:{slot*4}')
            e('s_nop 1')
        e('s_mov_b64 exec, -1')
        e(f'L_dbg{DB}:')
def mktag():
    e(f's_add_u32 s{sTAG}, s{sTAG}, 1')
    e(f's_and_b32 s{sT4}, s{sTAG}, 0xff')
    e(f's_cmp_eq_u32 s{sT4}, 0')
    e(f's_addc_u32 s{sTAG}, s{sTAG}, 0')
    e(f's_bfe_u32 s{sC2}, s{sTAG}, 0x40008')
    e(f's_lshl_b32 s{sC2}, s{sC2}, 22')
    e(f's_add_u32 s{sC2}, s{sC2}, {C2}')
def masks():
    e('v_and_b32 v18, 1, v0')
    e('v_lshlrev_b32 v18, 4, v18')
    e('v_mov_b32 v19, 0xffff')
    e('v_lshlrev_b32 v19, v18, v19')
    e('v_bfe_u32 v18, v0, 1, 2')
    for j in range(4):
        e(f'v_cmp_eq_u32 vcc, {j}, v18')
        e('s_nop 1')
        e(f'v_cndmask_b32 v{14+j}, 0, v19, vcc')
    e('v_mov_b32 v18, 0xffffff00')
def xg_reduce(op, v, t):
    e(f'v_mov_b32 v{t}, v{v}')
    e('s_nop 1')
    e(f'v_permlane16_swap_b32 v{t}, v{v}')
    e('s_nop 1')
    e(f'{op} v{v}, v{v}, v{t}')
    e(f'v_mov_b32 v{t}, v{v}')
    e('s_nop 1')
    e(f'v_permlane32_swap_b32 v{t}, v{v}')
    e('s_nop 1')
    e(f'{op} v{v}, v{v}, v{t}')
def lds_spin(label, off, val, sl=1, ge=False, bound=None):
    e(f'v_mov_b32 v12, {FL+off}')
    e(f's_mov_b32 s{sSPIN}, 0')
    e(f'{label}:')
    e('ds_read_b32 v13, v12')
    e('s_waitcnt lgkmcnt(0)')
    e(f'v_readfirstlane_b32 s{sT4}, v13')
    e(f's_cmp_{"ge" if ge else "eq"}_u32 s{sT4}, {val}')
    e(f's_cbranch_scc1 {label}_ok')
    if sl: e(f's_sleep {sl}')
    e(f's_add_u32 s{sSPIN}, s{sSPIN}, 1')
    e(f's_cmp_lt_u32 s{sSPIN}, {bound if bound else MAXSPIN*20}')
    e(f's_cbranch_scc1 {label}')
    e(f'{label}_ok:')
def lds_inc(off):
    e(f'v_mov_b32 v12, {FL+off}')
    e('v_mov_b32 v13, 1')
    e('s_mov_b64 exec, 1')
    e('ds_add_u32 v12, v13')
    e('s_mov_b64 exec, -1')

NAME = 'standalone__gqa_block_cached__decode_kernel'
hdr = open('standalone__gqa_block_cached__decode.s.ref').read().split('\n')
for l in hdr:
    if l.startswith('; Override') : break
    L.append(l)
L.append(f'; @launch grid=(256,1,1) block=(576,1,1) lds={LDS_TOTAL}')
for l in """
 GQA decode (q-proj, attention over the KV cache, out-proj) as one persistent launch, one workgroup per CU.
 Workgroup b: kv head h = b & 7, key split s = b >> 3 (256 keys). 9 waves:
   wave 0     comm : q-projection slice (16 rows of wq), q reduce/broadcast inside the head group, later the
                     split combine, the out-projection slice (16 rows of wo) and the final column reduce
   waves 1-4  K    : stream K into LDS (LDS-DMA, xor-swizzled), scores by MFMA, true max, exp, P table in LDS
   waves 5-8  V    : stream V into registers in two phases, P*V by MFMA (one-hot A operand), publish partials
 Cross-workgroup messages are dwords whose low byte is a per-launch tag (epoch word in d_ws + 1).
 Messages inside a head group are stored plainly (fast when the group shares an XCD L2); write-through
 copies in a second region make every placement correct. The last hop always uses write-through stores.
""".strip('\n').split('\n'): L.append(';' + l)
L.append('.amdgcn_target "amdgcn-amd-amdhsa--gfx950"')
L.append('.text')
L.append(f'.globl {NAME}')
L.append('.p2align 8')
L.append(f'.type {NAME},@function')
L.append(f'{NAME}:')
e('s_cmp_ge_u32 s2, 256')
e('s_cbranch_scc1 L_end')
e('s_load_dwordx16 s[4:19], s[0:1], 0')
stamp(0)
e('v_lshrrev_b32 v1, 6, v0')
e('v_and_b32 v0, 63, v0')
e(f'v_readfirstlane_b32 s{sW}, v1')
PF = opt('pf', 1)
if PF:
    e('s_getpc_b64 s[84:85]')
    e('L_pc:')
    e(f's_sub_u32 s84, s84, L_pc-{NAME}')
    e('s_subb_u32 s85, s85, 0')
    e('s_bfe_u32 s86, s2, 0x10003')
    e('s_mul_i32 s86, s86, 9')
    e(f's_add_u32 s86, s86, s{sW}')
    e('s_lshl_b32 s86, s86, 10')
    e('v_lshl_add_u32 v160, v0, 4, s86')
    e('v_min_u32 v160, (L_codeend-'+NAME+'-16) & 0xfffffff0, v160')
    e('global_load_dwordx4 v[164:167], v160, s[84:85]')
if opt('xmap', 0):
    e(f's_lshr_b32 s{sH}, s2, 5')
    e(f's_and_b32 s{sS}, s2, 31')
else:
    e(f's_and_b32 s{sH}, s2, 7')
    e(f's_lshr_b32 s{sS}, s2, 3')
e('v_and_b32 v2, 15, v0')
e('v_lshrrev_b32 v3, 4, v0')
e(f's_lshl_b32 s{sT0}, s{sH}, 22')
e(f's_lshl_b32 s{sT1}, s{sS}, 17')
e(f's_add_u32 s{sT0}, s{sT0}, s{sT1}')
e(f's_lshl_b32 s{sBP}, s{sH}, 5')
e(f's_add_u32 s{sBP}, s{sBP}, s{sS}')
e(f's_cmp_eq_u32 s{sW}, 0')
e('s_cbranch_scc1 L_comm')
e(f's_cmp_ge_u32 s{sW}, 5')
e('s_cbranch_scc1 L_vw')

e('s_barrier')
e(f's_sub_u32 s{sW}, s{sW}, 1')
e(f's_lshl_b32 s{sT1}, s{sW}, 15')
e(f's_add_u32 s{sT0}, s{sT0}, s{sT1}')
e('v_lshrrev_b32 v5, 5, v0')
e('v_and_b32 v4, 31, v0')
e('v_xor_b32 v4, v4, v5')
e('v_lshlrev_b32 v4, 4, v4')
e('v_lshl_add_u32 v4, v5, 9, v4')
ROT = opt('rot', 1)
if ROT:
    e(f's_lshl_b32 s91, s{sW}, 1')
    e(f's_add_u32 s91, s91, s{sS}')
    if ROT == 1: e(f's_add_u32 s91, s91, s{sH}')
    e(f's_and_b32 s90, s91, 1')
    e(f's_lshl_b32 s90, s90, 7')
    e(f'v_xor_b32 v4, s90, v4')
else:
    e('s_mov_b32 s91, 0')
e('s_mov_b32 s93, 0')
e('s_waitcnt lgkmcnt(0)')
srd(S_K, 6, 33554432)
e('L_kl:')
e('s_add_u32 s90, s91, s93')
e('s_and_b32 s90, s90, 7')
e('s_lshl_b32 s90, s90, 12')
e(f's_add_u32 s{sT2}, s{sT0}, s90')
e(f's_add_u32 m0, s{sT1}, s90')
for q in range(4):
    vr = 5 + (q & 1)
    e(f'v_xor_b32 v{vr}, {q*32}, v4')
    e(f's_waitcnt vmcnt({WK-1})')
    e(f'buffer_load_dwordx4 v{vr}, s[{S_K}:{S_K+3}], s{sT2} offen offset:{q*1024}{nt} lds')
e('v_xor_b32 v4, 0x80, v4')
e('s_add_u32 s93, s93, 1')
e('s_cmp_lt_u32 s93, 8')
e('s_cbranch_scc1 L_kl')
lds_inc(16)
stamp(1)
e(f's_load_dword s{sTAG}, s[18:19], {EPOCH}')
e(f's_mov_b32 s{sC}, 0x3db8aa3b')
if TIMED: srd(S_WS, 18, 268435456)
for k in range(4):
    e(f'v_add_u32 v{8+k}, {4*k}, v3')
    e(f'v_xor_b32 v{8+k}, v{8+k}, v2')
    e(f'v_lshlrev_b32 v{8+k}, 4, v{8+k}')
    e(f'v_lshl_add_u32 v{8+k}, v2, 9, v{8+k}')
    e(f'v_add_u32 v{8+k}, s{sT1}, v{8+k}')
e('v_lshrrev_b32 v40, 3, v2')
e('v_lshlrev_b32 v41, 9, v40')
e('v_lshl_add_u32 v41, v3, 4, v41')
e(f'v_add_u32 v41, {QL}, v41')
for r in range(20, 36): e(f'v_mov_b32 v{r}, 0')
e('v_mov_b32 v18, 0xffffff00')
e('s_waitcnt lgkmcnt(0)')
mktag()
e('v_lshlrev_b32 v42, 10, v40')
e('v_lshl_add_u32 v42, v3, 2, v42')
e(f's_lshl_b32 s{sT2}, s{sW}, 6')
e(f's_add_u32 s{sT2}, s{sT2}, {PL}')
e(f'v_add_u32 v42, s{sT2}, v42')
e('v_lshlrev_b32 v43, 4, v40')
e(f'v_add_u32 v43, {MB}, v43')
e(f's_lshl_b32 s{sT2}, s{sW}, 2')
e(f'v_add_u32 v44, s{sT2}, v43')
lds_spin('L_kq', 0, 1, sl=LSL)
stamp(2)
for i in range(8):
    e(f'ds_read_b128 v[{64+4*i}:{67+4*i}], v41 offset:{i*64}')
e('s_waitcnt vmcnt(0)')
def kreads(T):
    b = 96 + (T&1)*32
    for i in range(8):
        e(f'ds_read_b128 v[{b+4*i}:{b+3+4*i}], v{8+(i&3)} offset:{T*8192+(i>>2)*256}')
kreads(0)
for T in range(4):
    b = 96 + (T&1)*32
    if T < 3: kreads(T+1)
    e(lgk(8) if T < 3 else 's_waitcnt lgkmcnt(0)')
    for i in range(8):
        e(f'v_mfma_f32_16x16x32_bf16 v[{20+4*T}:{23+4*T}], v[{b+4*i}:{b+3+4*i}], v[{64+4*i}:{67+4*i}], v[{20+4*T}:{23+4*T}]')
e('s_nop 7')
e('v_max3_f32 v36, v20, v21, v22')
e('v_max3_f32 v37, v23, v24, v25')
e('v_max3_f32 v36, v36, v26, v27')
e('v_max3_f32 v37, v37, v28, v29')
e('v_max3_f32 v36, v36, v30, v31')
e('v_max3_f32 v37, v37, v32, v33')
e('v_max3_f32 v36, v36, v34, v35')
e('v_max_f32 v36, v36, v37')
xg_reduce('v_max_f32', 36, 37)
e('s_mov_b64 exec, 0x101')
e('ds_write_b32 v44, v36')
e('s_mov_b64 exec, -1')
lds_inc(4)
lds_spin('L_km', 4, 4, sl=0)
e('ds_read_b128 v[64:67], v43')
e('s_waitcnt lgkmcnt(0)')
e('v_max3_f32 v36, v64, v65, v66')
e('v_max_f32 v36, v36, v67')
e(f'v_mul_f32 v36, s{sC}, v36')
e(f'v_bfi_b32 v36, v18, v36, s{sTAG}')
for r in range(20, 36): e(f'v_fma_f32 v{r}, v{r}, s{sC}, -v36')
for r in range(20, 36): e(f'v_exp_f32 v{r}, v{r}')
e('s_nop 0')
e('v_add_f32 v37, v20, v21')
e('v_add_f32 v38, v22, v23')
for r in range(24, 36, 2):
    e(f'v_add_f32 v37, v37, v{r}')
    e(f'v_add_f32 v38, v38, v{r+1}')
e('v_add_f32 v37, v37, v38')
for r in range(20, 36): e(f'v_cvt_pk_bf16_f32 v{r}, v{r}, v{r}')
e('s_mov_b32 exec_lo, 0x01010101')
e('s_mov_b32 exec_hi, 0x01010101')
for T in range(4):
    for r in (0, 2):
        e(f'ds_write2_b32 v42, v{20+4*T+r}, v{21+4*T+r} offset0:{r*64+T*4} offset1:{(r+1)*64+T*4}')
e('s_mov_b64 exec, -1')
xg_reduce('v_add_f32', 37, 38)
e(f'v_add_u32 v44, {LB-MB}, v44')
e('v_lshlrev_b32 v43, 2, v40')
e(f'v_add_u32 v43, {MR}, v43')
e('s_mov_b64 exec, 0x101')
e('ds_write_b32 v44, v37')
e('ds_write_b32 v43, v36')
e('s_mov_b64 exec, -1')
e('s_waitcnt lgkmcnt(0)')
lds_inc(8)
stamp(3)
if TIMED:
    e(f's_cmp_eq_u32 s{sW}, {KREC}')
    e('s_cbranch_scc0 L_kw_end')
    store_stamps([(0,0),(1,1),(2,2),(3,3)] + ([(5,4),(6,5),(7,6)] if opt('kst',0) else []))
    e('L_kw_end:')
e('s_endpgm')

e('L_vw:')
e('s_barrier')
e(f's_sub_u32 s{sW}, s{sW}, 5')
e(f's_and_b32 s{sT1}, s{sW}, 1')
e(f's_lshr_b32 s{sT2}, s{sW}, 1')
e(f's_lshl_b32 s3, s{sT1}, 8')
e(f's_add_u32 s{sT0}, s{sT0}, s3')
e(f's_lshl_b32 s3, s{sT2}, 16')
e(f's_add_u32 s{sT0}, s{sT0}, s3')
e('v_lshlrev_b32 v7, 9, v3')
e('v_lshl_add_u32 v7, v2, 4, v7')
e('s_waitcnt lgkmcnt(0)')
srd(S_V, 8, 33554432)
srd(S_WS, 18, 268435456)
e(f's_load_dword s{sTAG}, s[18:19], {EPOCH}')
masks()
e('v_add_u32 v19, 4096, v7')
for r in range(20, 24): e(f'v_mov_b32 v{r}, 0')
e('v_lshrrev_b32 v4, 3, v2')
e('v_lshlrev_b32 v4, 10, v4')
e('v_lshl_add_u32 v4, v3, 8, v4')
e(f's_lshl_b32 s3, s{sT2}, 7')
e(f's_add_u32 s3, s3, {PL}')
e('v_add_u32 v4, s3, v4')
e('v_lshlrev_b32 v6, 4, v0')
e(f's_lshl_b32 s3, s{sT1}, 10')
e('v_add_u32 v6, s3, v6')
e('v_lshrrev_b32 v8, 1, v3')
e('v_lshrrev_b32 v9, 1, v2')
e('v_lshl_add_u32 v9, v8, 4, v9')
e('v_lshlrev_b32 v9, 12, v9')
e('v_and_b32 v10, 1, v2')
e('v_lshl_add_u32 v9, v10, 5, v9')
e('v_and_b32 v10, 1, v3')
e('v_lshl_add_u32 v9, v10, 4, v9')
e(f's_lshl_b32 s3, s{sT1}, 15')
e('v_add_u32 v5, s3, v9')
e(f'v_lshlrev_b32 v9, 4, v8')
e(f'v_add_u32 v9, {LB}, v9')
e(f'v_lshlrev_b32 v10, 2, v8')
e(f'v_add_u32 v10, {MR}, v10')
e(f's_lshl_b32 s{sT3}, s{sH}, 17')
e(f's_lshl_b32 s3, s{sS}, 7')
e(f's_add_u32 s{sT3}, s{sT3}, s3')
e(f's_add_u32 s{sT3}, s{sT3}, {OI}')
e('s_waitcnt lgkmcnt(0)')
mktag()
VB = 32
e(f's_lshl_b32 s91, s{sT2}, 2')
e(f's_add_u32 s91, s91, s{sS}')
if ROT == 1: e(f's_add_u32 s91, s91, s{sH}')
if not ROT: e('s_mov_b32 s91, 0')
def vaddr(i):
    if i % 4 == 0:
        e(f's_add_u32 s90, s91, {i>>2}')
        e(f's_and_b32 s90, s90, 7')
        e(f's_lshl_b32 s90, s90, 13')
        e(f's_add_u32 s94, s{sT0}, s90')
def vissue(i):
    d = VB + i*4
    off = (i & 3) * 2048
    if off < 4096: e(f'buffer_load_dwordx4 v[{d}:{d+3}], v7, s[{S_V}:{S_V+3}], s94 offen offset:{off}{nt}')
    else: e(f'buffer_load_dwordx4 v[{d}:{d+3}], v19, s[{S_V}:{S_V+3}], s94 offen offset:{off-4096}{nt}')
def vload(i):
    vaddr(i)
    if i >= WV: e(f's_waitcnt vmcnt({WV-1})')
    vissue(i)
PPS = [160, 164]
def ppread(q4):
    b = PPS[q4 & 1]
    e(f's_add_u32 s95, s91, {q4}')
    e(f's_and_b32 s95, s95, 7')
    e(f's_lshl_b32 s95, s95, 4')
    e(f'v_add_u32 v12, s95, v4')
    e(f'ds_read_b128 v[{b}:{b+3}], v12')
ASET = [0, 28]
def ands(i):
    pp = PPS[(i//4) & 1] + (i & 3)
    a = ASET[i & 1]
    for j in range(4): e(f'v_and_b32 v{a+j}, v{pp}, v{14+j}')
def pv(i, outstanding):
    if i % 4 == 0 and i//4 < 7: ppread(i//4 + 1)
    e(f's_waitcnt vmcnt({outstanding})')
    a = ASET[i & 1]
    d = VB + i*4
    if i % 4 == 3 and i < 31: e('s_waitcnt lgkmcnt(0)')
    else: e('s_nop 0')
    e(f'v_mfma_f32_16x16x32_bf16 v[20:23], v[{a}:{a+3}], v[{d}:{d+3}], v[20:23]')
    if i < 31: ands(i+1)
e(f's_cmp_eq_u32 s{sT2}, 1')
e('s_cbranch_scc1 L_v2')
lds_spin('L_v1k', 16, opt('kthr', 1), sl=LSL, ge=True)
for i in range(32): vload(i)
lds_inc(20)
lds_spin('L_v1p', 8, 4, sl=LSL)
ppread(0)
e('s_waitcnt lgkmcnt(0)')
ands(0)
for i in range(32): pv(i, 31 - i)
e('s_nop 7')
e('ds_write_b128 v6, v[20:23]')
e('s_waitcnt lgkmcnt(0)')
lds_inc(24)
srd(S_WO, 12, 3670016)
e(f's_lshl_b32 s{sT0}, s{sBP}, 4')
e(f's_mul_i32 s{sT0}, s{sT0}, 896')
e(f's_mul_i32 s3, s{sT1}, {7*1024}')
e(f's_add_u32 s{sT0}, s{sT0}, s3')
e(f's_add_u32 s3, s3, {WOL}')
e('v_mov_b32 v7, v6')
e(f's_lshl_b32 s{sT2}, s{sT1}, 10')
e(f'v_subrev_u32 v7, s{sT2}, v7')
lds_spin('L_v1w', 12, opt('wothr', 2), sl=LSL, ge=True)
e('s_mov_b32 m0, s3')
e('s_nop 0')
for jj in range(4):
    e(f'buffer_load_dwordx4 v7, s[{S_WO}:{S_WO+3}], s{sT0} offen offset:{jj*1024}{nt} lds')
e(f's_add_u32 s3, s3, 4096')
e(f's_add_u32 s{sT0}, s{sT0}, 4096')
e('s_mov_b32 m0, s3')
e('s_nop 0')
for jj in range(3):
    e(f'buffer_load_dwordx4 v7, s[{S_WO}:{S_WO+3}], s{sT0} offen offset:{jj*1024}{nt} lds')
e('s_waitcnt vmcnt(0)')
lds_inc(28)
e('s_endpgm')
e('L_v2:')
lds_spin('L_v2k', 20, opt('vthr', 1), sl=LSL, ge=True)
stamp(1)
for i in range(NI): vload(i)
lds_spin('L_v2p', 8, 4, sl=LSL)
stamp(3)
e('ds_read_b128 v[160:163], v9')
e('ds_read_b32 v24, v10')
e('s_waitcnt lgkmcnt(0)')
e('v_add_f32 v160, v160, v161')
e('v_add_f32 v162, v162, v163')
e('v_add_f32 v25, v160, v162')
e('v_mov_b32 v26, v24')
e('v_mov_b32 v27, v24')
for r in range(24, 28): e(f'v_bfi_b32 v{r}, v18, v{r}, s{sTAG}')
e(f'buffer_store_dwordx4 v[24:27], v5, {W}, s{sT3} offen offset:64')
e(f's_add_u32 s3, s{sT3}, s{sC2}')
MLLATE = opt('mllate', 1)
if not MLLATE: e(f'buffer_store_dwordx4 v[24:27], v5, {W}, s3 offen offset:64 sc1')
NX = 1 if MLLATE else 2
ppread(0)
e('s_waitcnt lgkmcnt(0)')
ands(0)
done = 0
rem = 32 - NI
per = -(-NI // max(rem, 1))
def vload2(i):
    vaddr(i)
    k = WV - 1
    if i - WV < NI: k_ = WV - 1 + (NX if (i - WV + 1) <= NI - 1 + 1 and True else 0)
    extra = NX if (i - WV) <= NI - 1 else 0
    e(f's_waitcnt vmcnt({WV-1+extra})')
    vissue(i)
for i in range(NI, 32):
    vload2(i)
    for k in range(per):
        if done < NI:
            pv(done, (i - done) + NX)
            done += 1
lds_inc(12)
stamp(2)
lds_spin('L_v2r', 24, 2, sl=0)
e('ds_read_b128 v[8:11], v6')
while done < 32:
    extra = NX if done <= NI - 1 else 0
    pv(done, 31 - done + extra)
    done += 1
stamp(4)
e('s_waitcnt lgkmcnt(0)')
e('s_nop 6')
for r in range(4): e(f'v_add_f32 v{20+r}, v{20+r}, v{8+r}')
for r in range(4): e(f'v_bfi_b32 v{20+r}, v18, v{20+r}, s{sTAG}')
e(f'buffer_store_dwordx4 v[20:23], v5, {W}, s{sT3} offen')
CDLY = opt('cdly', 1)
if CDLY:
    if TIMED: stamp(5)
    lds_spin('L_v2c', 32, 1, sl=4, ge=True, bound=opt('cbound', 40))
e(f'buffer_store_dwordx4 v[20:23], v5, {W}, s3 offen sc1')
if MLLATE: e(f'buffer_store_dwordx4 v[24:27], v5, {W}, s3 offen offset:64 sc1')
if TIMED:
    if not CDLY: stamp(5)
    if opt('both', 0):
        e(f's_cmp_eq_u32 s{sW}, 3')
        e('s_cbranch_scc1 L_vrec3')
        store_stamps([(5,4)])
        e('s_endpgm')
        e('L_vrec3:')
        store_stamps([(2,5),(4,7),(5,6)])
    else:
        e(f's_cmp_eq_u32 s{sW}, {VREC}')
        e('s_cbranch_scc0 L_end')
        store_stamps([(4,7)] if opt('kst',0) else [(3,4),(2,5),(4,7),(5,6)])
e('s_endpgm')

e('L_comm:')
e('s_setprio 3')
e(f'v_mov_b32 v12, {FL}')
for r in range(20, 24): e(f'v_mov_b32 v{r}, 0')
e('ds_write_b128 v12, v[20:23]')
e('ds_write_b128 v12, v[20:23] offset:16')
e('ds_write_b128 v12, v[20:23] offset:32')
e('s_waitcnt lgkmcnt(0)')
e('s_barrier')
e('v_lshlrev_b32 v6, 15, v3')
e('v_lshl_add_u32 v6, v2, 4, v6')
e('v_lshlrev_b32 v7, 3, v3')
e(f's_lshl_b32 s{sT0}, s{sS}, 17')
e(f's_lshl_b32 s{sT1}, s{sH}, 10')
e(f's_add_u32 s{sT0}, s{sT0}, s{sT1}')
e(f's_lshl_b32 s{sT2}, s{sS}, 5')
e('v_lshlrev_b32 v4, 4, v0')
e('s_waitcnt lgkmcnt(0)')
srd(S_X, 4, 896)
srd(S_WQ, 10, 3670016)
e(f'buffer_load_dwordx2 v[28:29], v7, s[{S_X}:{S_X+3}], s{sT2} offen')
e(f's_load_dword s{sTAG}, s[18:19], {EPOCH}')
for k in range(4):
    if k: e(f's_add_u32 s{sT0}, s{sT0}, 8192')
    for t in range(4):
        d = 64 + (k*4+t)*4
        e(f'buffer_load_dwordx4 v[{d}:{d+3}], v6, s[{S_WQ}:{S_WQ+3}], s{sT0} offen offset:{t*256}{nt if opt("wqnt",1) else ""}' if not opt('nowq',0) else 's_nop 0')
srd(S_WS, 18, 268435456)
e(f's_lshl_b32 s{sT0}, s{sH}, 16')
e(f's_lshl_b32 s{sT1}, s{sS}, 6')
e(f's_add_u32 s96, s{sT1}, s{sT0}')
e(f's_lshl_b32 s{sT2}, s{sS}, 11')
e(f's_add_u32 s{sT0}, s{sT0}, s{sT2}')
e(f's_add_u32 s92, s{sT0}, {QA}')
e(f's_add_u32 s93, s{sT0}, {QI}')
PTP = opts.get('ptpol','sc1').replace('plain','')
for (rr, ss, oo) in ((128,92,0),(132,92,1024),(136,93,0),(140,93,1024)):
    e(f'buffer_load_dwordx4 v[{rr}:{rr+3}], v4, {W}, s{ss} offen offset:{oo} {PTP}' if not opt('nopt',0) else 's_nop 0')
srd(S_OUT, 14, 896)
masks()
for r in range(48, 64): e(f'v_mov_b32 v{r}, 0')
e('v_lshrrev_b32 v1, 1, v2')
e('v_lshlrev_b32 v1, 11, v1')
e('v_and_b32 v10, 1, v2')
e('v_lshl_add_u32 v1, v10, 5, v1')
e('v_lshl_add_u32 v1, v3, 4, v1')
e('v_lshrrev_b32 v9, 2, v0')
e('v_lshlrev_b32 v9, 11, v9')
e('v_and_b32 v10, 3, v0')
e('v_lshl_add_u32 v9, v10, 4, v9')
e('v_mov_b32 v10, 0xffff0000')
e('v_lshlrev_b32 v5, 3, v0')
e(f'v_add_u32 v5, {QL}, v5')
e('s_mov_b32 s4, 0x01000100')
e('s_mov_b32 s5, 0x03020302')
e('s_waitcnt vmcnt(20) lgkmcnt(0)')
mktag()
if opt('noq',0):
    e(f's_and_b32 s3, s{sTAG}, 0xff')
    e('v_mov_b32 v19, s3')
    e('s_waitcnt vmcnt(0)')
    e('s_branch L_skipq')
e(f's_and_b32 s3, s{sTAG}, 0xff')
e('v_mov_b32 v19, s3')
e('v_mov_b32 v7, v9')
e('v_perm_b32 v20, v28, v28, s4')
e('v_perm_b32 v21, v28, v28, s5')
e('v_perm_b32 v22, v29, v29, s4')
e('v_perm_b32 v23, v29, v29, s5')
for k in range(4):
    for j in range(4):
        e(f'v_and_b32 v{32+4*k+j}, v{20+k}, v{14+j}')
cnt = 20
for k in range(4):
    cnt -= 4
    e(f's_waitcnt vmcnt({cnt})')
    for t in range(4):
        d = 64 + (k*4+t)*4
        e(f'v_mfma_f32_16x16x32_bf16 v[{48+4*t}:{51+4*t}], v[{32+4*k}:{35+4*k}], v[{d}:{d+3}], v[{48+4*t}:{51+4*t}]')
e(f's_add_u32 s{sT4}, s96, {QA}')
e('s_mov_b32 exec_hi, 0')
e('s_waitcnt vmcnt(0)')
e('s_nop 3')
for t in range(4):
    b = 48 + 4*t
    for r in range(4):
        e(f'v_bfi_b32 v{b+r}, v18, v{b+r}, s{sTAG}')
    e(f'buffer_store_dwordx4 v[{b}:{b+3}], v1, {W}, s{sT4} offen')
    if t < 3: e(f's_add_u32 s{sT4}, s{sT4}, 16384')
e('s_mov_b64 exec, -1')
stamp(8)

def flush(level):
    e('s_mov_b32 exec_hi, 0')
    e(f's_add_u32 s{sT4}, s96, s{sC2}')
    e(f's_add_u32 s91, s{sT4}, {QA}')
    for t in range(4):
        b = 48 + 4*t
        e(f'buffer_store_dwordx4 v[{b}:{b+3}], v1, {W}, s91 offen sc1')
        if t < 3: e(f's_add_u32 s91, s91, 16384')
    e('s_mov_b64 exec, -1')
    if level >= 2:
        e(f's_add_u32 s91, s{sT4}, {QI}')
        e(f'buffer_store_dwordx4 v[44:47], v7, {W}, s91 offen sc1')
        e(f's_add_u32 s91, s{sT4}, {QI+32768}')
        e(f'buffer_store_dwordx4 v[44:47], v7, {W}, s91 offen sc1')
FP = opts.get('fp','sc1').replace('+',' ')
def poll(label, mkloads, base, nwords, sbase, level, pre=0, rs=0, c2=True, hook=None):
    def check():
        e(f'v_msad_u8 v12, v{base}, v19, 0')
        e(f'v_msad_u8 v13, v{base+1}, v19, 0')
        for t in range(2, nwords, 2):
            e(f'v_msad_u8 v12, v{base+t}, v19, v12')
            e(f'v_msad_u8 v13, v{base+t+1}, v19, v13')
        e('v_or_b32 v12, v12, v13')
        e('v_cmp_ne_u32 vcc, 0, v12')
    e(f's_mov_b32 s{sSPIN}, 0')
    if pre: e(f's_sleep {pre}')
    e(f's_branch {label}_ld')
    e(f'{label}:')
    if rs: e(f's_sleep {rs}')
    e(f's_add_u32 s{sSPIN}, s{sSPIN}, 1')
    e(f's_cmp_ge_u32 s{sSPIN}, {SOFT}')
    e(f's_cbranch_scc1 {label}_slow')
    e(f'{label}_ld:')
    for l in mkloads(base, sbase, FP if c2 else 'sc1'): e(l)
    if hook: hook('f')
    e('s_waitcnt vmcnt(0)')
    check()
    e(f's_cbranch_vccnz {label}')
    e(f's_branch {label}_done')
    e(f'{label}_slow:')
    e(f's_and_b32 s91, s{sSPIN}, 15')
    e(f's_cmp_eq_u32 s91, {SOFT & 15}')
    e(f's_cbranch_scc0 {label}_nf')
    flush(level)
    e(f'{label}_nf:')
    e(f's_mov_b32 s90, s{sbase}')
    if c2:
        e(f's_bitcmp1_b32 s{sSPIN}, 0')
        e(f's_cbranch_scc0 {label}_c1')
        e(f's_add_u32 s90, s{sbase}, s{sC2}')
        e(f'{label}_c1:')
    for l in mkloads(base, 90, 'sc1'): e(l)
    if hook: hook('s')
    e('s_waitcnt vmcnt(0)')
    check()
    e(f's_cbranch_vccz {label}_done')
    e('s_sleep 2')
    e(f's_add_u32 s{sSPIN}, s{sSPIN}, 1')
    e(f's_cmp_lt_u32 s{sSPIN}, {MAXSPIN}')
    e(f's_cbranch_scc1 {label}_slow')
    e(f'{label}_done:')

poll('L_pa', lambda b, sr, FP: [f'buffer_load_dwordx4 v[{b}:{b+3}], v4, {W}, s{sr} offen {FP}',
                            f'buffer_load_dwordx4 v[{b+4}:{b+7}], v4, {W}, s{sr} offen offset:1024 {FP}']
                            + ([f'buffer_load_dwordx4 v[136:139], v4, {W}, s93 offen {FP}',
                               f'buffer_load_dwordx4 v[140:143], v4, {W}, s93 offen offset:1024 {FP}'] if opt('keepb', 1) else []),
     64, 8, 92, 1, rs=RSA)
for c in range(4): e(f'v_add_f32 v{20+c}, v{64+c}, v{68+c}')
for sh in (4, 8):
    for r in range(20, 24):
        e(f'v_add_f32_dpp v{r}, v{r}, v{r} row_ror:{sh} row_mask:0xf bank_mask:0xf')
for sw in ('v_permlane16_swap_b32', 'v_permlane32_swap_b32'):
    for c in range(4): e(f'v_mov_b32 v{24+c}, v{20+c}')
    e('s_nop 1')
    for c in range(4): e(f'{sw} v{24+c}, v{20+c}')
    e('s_nop 1')
    for c in range(4): e(f'v_add_f32 v{20+c}, v{20+c}, v{24+c}')
for r in range(4):
    e(f'v_cvt_pk_bf16_f32 v{24+r}, v{20+r}, v{20+r}')
for r in range(4):
    e(f'v_and_or_b32 v{44+r}, v{24+r}, v10, s3')
e(f's_add_u32 s{sT4}, s96, {QI}')
e(f'buffer_store_dwordx4 v[44:47], v7, {W}, s{sT4} offen')
e(f's_add_u32 s{sT4}, s96, {QI+32768}')
e(f'buffer_store_dwordx4 v[44:47], v7, {W}, s{sT4} offen')
stamp(9)
poll('L_pq', lambda b, sr, FP: [f'buffer_load_dwordx4 v[{b}:{b+3}], v4, {W}, s{sr} offen {FP}',
                            f'buffer_load_dwordx4 v[{b+4}:{b+7}], v4, {W}, s{sr} offen offset:1024 {FP}'],
     96, 8, 93, 2, rs=RSQ)
e('s_mov_b32 s3, 0x07060302')
e(f'v_perm_b32 v20, v97, v96, s3')
e(f'v_perm_b32 v21, v99, v98, s3')
e(f'v_perm_b32 v22, v101, v100, s3')
e(f'v_perm_b32 v23, v103, v102, s3')
e(f'ds_write_b64 v5, v[20:21]')
e(f'ds_write_b64 v5, v[22:23] offset:512')
e('L_skipq:')
e(f'v_mov_b32 v12, {FL}')
e('v_mov_b32 v13, 1')
e('s_waitcnt lgkmcnt(0)')
e('ds_write_b32 v12, v13')
if opt('latepoll',0): e('s_sleep 127')
stamp(10)
PT = opts.get('ptp', '')
if PT:
    e('s_cmp_ge_u32 s2, 112')
    e('s_cbranch_scc1 L_nopt')
    e(f's_lshl_b32 s92, s2, 12')
    e(f's_add_u32 s92, s92, {PI}')
    for k in range(4):
        e(f'buffer_load_dwordx4 v[{104+4*k}:{107+4*k}], v4, {W}, s92 offen offset:{k*1024} {PT.replace("+"," ").replace("plain","")}')
    e('L_nopt:')
WO = 104
e('v_mul_u32_u24 v6, 3584, v3')
e('v_lshl_add_u32 v6, v2, 4, v6')
e(f'v_add_u32 v6, {WOL}, v6')
e('v_lshlrev_b32 v5, 7, v2')
e('v_lshl_add_u32 v4, v3, 4, v5')
e('v_add_u32 v5, 64, v5')
e(f's_lshl_b32 s92, s{sBP}, 12')
e(f's_add_u32 s92, s92, {OI}')
ACC = 88
for r in range(ACC, ACC+16): e(f'v_mov_b32 v{r}, 0')
PLA = opt('pla', 0)
e('v_lshl_add_u32 v8, v2, 1, v3')
e(f'v_lshlrev_b32 v8, {4 if PLA else 12}, v8')
e(f's_lshl_b32 s95, s{sBP}, {11 if PLA else 4}')
e(f's_add_u32 s95, s95, {PI}')
e(f's_mov_b32 s{sWOF}, 0')
e(f'v_mov_b32 v9, {FL+28}')
def wo_loads():
    for k in range(4):
        for t in range(4):
            d = WO + (k*4+t)*4
            e(f'ds_read_b128 v[{d}:{d+3}], v6 offset:{k*896+t*256}')
def wo_hook(sfx):
    e(f's_cmp_eq_u32 s{sWOF}, 1')
    e(f's_cbranch_scc1 L_wo_skip{sfx}')
    e('ds_read_b32 v10, v9')
    e('s_waitcnt lgkmcnt(0)')
    e(f'v_readfirstlane_b32 s91, v10')
    e(f's_cmp_ge_u32 s91, 2')
    e(f's_cbranch_scc0 L_wo_skip{sfx}')
    wo_loads()
    e(f's_mov_b32 s{sWOF}, 1')
    e(f'L_wo_skip{sfx}:')
PB = 28
poll('L_pm', lambda b, sr, FP: [f'buffer_load_dwordx4 v[{b}:{b+3}], v5, {W}, s{sr} offen {FP}',
              f'buffer_load_dwordx4 v[{b+4}:{b+7}], v5, {W}, s{sr} offen offset:2048 {FP}',
              ] + ([f'buffer_load_dwordx4 v[36:39], v4, {W}, s{sr} offen {FP}',
                    f'buffer_load_dwordx4 v[40:43], v4, {W}, s{sr} offen offset:2048 {FP}'] if opt('keepv', 1) else []),
     PB, 8, 92, 2, rs=opt('rsm', 1), hook=wo_hook)
e(f'v_max_f32 v20, v{PB}, v{PB+4}')
e('s_nop 1')
for sh in (8,4,2,1):
    e(f'v_max_f32_dpp v20, v20, v20 row_ror:{sh} row_mask:0xf bank_mask:0xf')
    e('s_nop 1')
e(f'v_sub_f32 v21, v{PB}, v20')
e(f'v_sub_f32 v22, v{PB+4}, v20')
e('v_exp_f32 v21, v21')
e('v_exp_f32 v22, v22')
e('s_nop 0')
e(f'v_mul_f32 v23, v21, v{PB+1}')
e(f'v_fma_f32 v23, v22, v{PB+5}, v23')
e('s_nop 1')
for sh in (8,4,2,1):
    e(f'v_add_f32_dpp v23, v23, v23 row_ror:{sh} row_mask:0xf bank_mask:0xf')
    e('s_nop 1')
e('v_rcp_f32 v23, v23')
e('s_nop 0')
e('v_mul_f32 v10, v21, v23')
e('v_mul_f32 v11, v22, v23')
e(f's_cmp_eq_u32 s{sWOF}, 1')
e('s_cbranch_scc1 L_wo_ok')
lds_spin('L_wow', 28, 2, sl=1)
wo_loads()
e('L_wo_ok:')
def vl(b, sr, FP):
    return [f'buffer_load_dwordx4 v[{b}:{b+3}], v4, {W}, s{sr} offen {FP}',
            f'buffer_load_dwordx4 v[{b+4}:{b+7}], v4, {W}, s{sr} offen offset:2048 {FP}']
VB2 = 36
poll('L_po', vl, VB2, 8, 92, 2, rs=RSO)
for k in range(4): e(f'v_mul_f32 v{24+k}, v10, v{VB2+k}')
for k in range(4): e(f'v_fma_f32 v{24+k}, v11, v{VB2+4+k}, v{24+k}')
stamp(12)
for sh in (8,4,2,1):
    for r in (24,25,26,27):
        e(f'v_add_f32_dpp v{r}, v{r}, v{r} row_ror:{sh} row_mask:0xf bank_mask:0xf')
for k in range(4):
    e(f'v_cvt_pk_bf16_f32 v{24+k}, v{24+k}, v{24+k}')
AOP = [64, 68, 72, 76]
for k in range(4):
    for j in range(4):
        e(f'v_and_b32 v{AOP[k]+j}, v{24+k}, v{14+j}')
e('s_waitcnt lgkmcnt(0)')
e('s_nop 0')
for t in range(4):
    for k in range(4):
        d = WO + (k*4+t)*4
        e(f'v_mfma_f32_16x16x32_bf16 v[{ACC+4*t}:{ACC+3+4*t}], v[{AOP[k]}:{AOP[k]+3}], v[{d}:{d+3}], v[{ACC+4*t}:{ACC+3+4*t}]')
e('s_mov_b32 exec_hi, 0')
for t in range(4):
    bb = ACC + 4*t
    if t == 3: e('s_nop 2')
    for r in range(4):
        e(f'v_bfi_b32 v{bb+r}, v18, v{bb+r}, s{sTAG}')
    if t: e(f's_add_u32 s95, s95, {512 if PLA else 32*4096}')
    e(f'buffer_store_dwordx4 v[{bb}:{bb+3}], v8, {W}, s95 offen sc1')
e('s_mov_b64 exec, -1')
if CDLY:
    e(f'v_mov_b32 v12, {FL+32}')
    e('v_mov_b32 v13, 1')
    e('ds_write_b32 v12, v13')
stamp(13)
NF = 112
e(f's_cmp_ge_u32 s2, {NF}')
e('s_cbranch_scc1 L_comm_done')
PB2 = 104
if PLA:
    e('v_lshlrev_b32 v4, 11, v0')
    e('v_add_u32 v5, 0x20000, v4')
    e('v_add_u32 v6, 0x40000, v4')
    e('v_add_u32 v28, 0x60000, v4')
    e(f's_lshl_b32 s92, s2, 4')
else:
    e('v_lshlrev_b32 v4, 4, v0')
    e(f's_lshl_b32 s92, s2, 12')
e(f's_add_u32 s92, s92, {PI}')
def pl(b, sr, FP):
    if PLA: return [f'buffer_load_dwordx4 v[{b+4*k}:{b+3+4*k}], v{(4,5,6,28)[k]}, {W}, s{sr} offen sc1' for k in range(4)]
    return [f'buffer_load_dwordx4 v[{b+4*k}:{b+3+4*k}], v4, {W}, s{sr} offen offset:{k*1024} sc1' for k in range(4)]
NPF = opt('npf', 1)
def fsum(b):
    for c in range(4):
        e(f'v_add_f32 v{8+c}, v{b+c}, v{b+4+c}')
        e(f'v_add_f32 v{20+c}, v{b+8+c}, v{b+12+c}')
    for c in range(4):
        e(f'v_add_f32 v{8+c}, v{8+c}, v{20+c}')
if NPF > 1:
    e(f's_mov_b32 s{sSPIN}, 0')
    e(f's_sleep {PREP}')
    for k in range(NPF):
        for l in pl(PB2+16*k, 92, 'sc1'): e(l)
        if k < NPF-1: e(f's_sleep {opt("slf", 10)}')
    e('L_pf:')
    for k in range(NPF):
        b = PB2+16*k
        e(f's_waitcnt vmcnt({4*(NPF-1)})')
        e(f'v_msad_u8 v12, v{b}, v19, 0')
        e(f'v_msad_u8 v13, v{b+1}, v19, 0')
        for t in range(2, 16, 2):
            e(f'v_msad_u8 v12, v{b+t}, v19, v12')
            e(f'v_msad_u8 v13, v{b+t+1}, v19, v13')
        e('v_or_b32 v12, v12, v13')
        e('v_cmp_ne_u32 vcc, 0, v12')
        e(f's_cbranch_vccz L_pf_ok{k}')
        for l in pl(b, 92, 'sc1'): e(l)
    e(f's_add_u32 s{sSPIN}, s{sSPIN}, 1')
    e(f's_cmp_lt_u32 s{sSPIN}, {SOFT//NPF}')
    e('s_cbranch_scc1 L_pf')
    e('s_waitcnt vmcnt(0)')
    poll('L_pp', pl, PB2, 16, 92, 2, rs=RSP, c2=False)
    fsum(PB2)
    e('s_branch L_pf_done')
    for k in range(NPF):
        e(f'L_pf_ok{k}:')
        fsum(PB2+16*k)
        if k < NPF-1: e('s_branch L_pf_done')
    e('L_pf_done:')
else:
    poll('L_pp', pl, PB2, 16, 92, 2, pre=PREP, rs=RSP, c2=False)
    fsum(PB2)
stamp(14)
for sh in (8,4,2,1):
    for r in (8,9,10,11):
        e(f'v_add_f32_dpp v{r}, v{r}, v{r} row_ror:{sh} row_mask:0xf bank_mask:0xf')
for sw in ('v_permlane16_swap_b32', 'v_permlane32_swap_b32'):
    for c in range(4): e(f'v_mov_b32 v{20+c}, v{8+c}')
    e('s_nop 1')
    for c in range(4): e(f'{sw} v{20+c}, v{8+c}')
    e('s_nop 1')
    for c in range(4): e(f'v_add_f32 v{8+c}, v{8+c}, v{20+c}')
e('v_cvt_pk_bf16_f32 v8, v8, v9')
e('v_cvt_pk_bf16_f32 v9, v10, v11')
e(f's_lshl_b32 s{sT0}, s2, 3')
e('v_mov_b32 v4, 0')
e('s_mov_b64 exec, 1')
e(f'buffer_store_dwordx2 v[8:9], v4, s[{S_OUT}:{S_OUT+3}], s{sT0} offen')
e('s_cmp_eq_u32 s2, 0')
e('s_cbranch_scc0 L_noepoch')
e(f'v_mov_b32 v10, s{sTAG}')
e(f'buffer_store_dword v10, v4, {W}, 0 offen offset:{EPOCH} sc1')
e('L_noepoch:')
e('s_mov_b64 exec, -1')
e('L_comm_done:')
if opt('enddly',0): e(f's_sleep {opt("enddly",0)}')
if TIMED:
    store_stamps([(8,8),(9,9),(10,10),(12,12),(13,13),(14,14)])
e('L_end:')
e('s_endpgm')
e('L_codeend:')
L.append('.section .rodata,"a"')
L.append('.p2align 6')
L.append(f'.amdhsa_kernel {NAME}')
L.append('  .amdhsa_next_free_vgpr 168')
L.append('  .amdhsa_next_free_sgpr 102')
L.append('  .amdhsa_accum_offset 168')
L.append('  .amdhsa_group_segment_fixed_size 0')
L.append('  .amdhsa_kernarg_size 64')
L.append('  .amdhsa_user_sgpr_count 2')
L.append('  .amdhsa_user_sgpr_kernarg_segment_ptr 1')
L.append('  .amdhsa_system_sgpr_workgroup_id_x 1')
L.append('.end_amdhsa_kernel')
open(sys.argv[1], 'w').write('\n'.join(L) + '\n')
```
